```python
import torch

def _softmax(x, axis=-1):
    return torch.softmax(x, dim=axis)
def _gelu(x):
    return torch.nn.functional.gelu(x, approximate="tanh")
def _silu(x):
    return torch.nn.functional.silu(x)
def _sigmoid(x):
    return torch.sigmoid(x)
def _layernorm(x, axis=-1, eps=1e-5):
    m = x.mean(dim=axis, keepdim=True)
    v = x.var(dim=axis, keepdim=True, unbiased=False)
    return (x - m) / torch.sqrt(v + eps)
def _scatter_add(tgt, idx, src, axis=0):
    return tgt.clone().index_add_(axis, idx, src)
def _segment_sum(src, seg, n):
    out = torch.zeros((n,) + src.shape[1:], dtype=src.dtype)
    return out.index_add_(0, seg, src)
def _pad(x, pw):
    flat = tuple(v for pair in reversed(pw) for v in pair)
    return torch.nn.functional.pad(x, flat)

kernel_name = 'standalone__mha_block_cached__near_ridge'

def setup_inputs():

    _w = (lambda a: (lambda t: t.to(torch.bfloat16) if t.is_floating_point() else t)(torch.as_tensor(a)))
    B, Sq, D = 16, 112, 512
    H, Sk, Dh = 32, 512, 128
    return {
        "x": _w((lambda *s: torch.randn(*s, dtype=torch.bfloat16) * 0.8)(B, Sq, D)),
        "k_cache": _w((lambda *s: torch.randn(*s, dtype=torch.bfloat16) * 0.8)(B, H, Sk, Dh)),
        "v_cache": _w((lambda *s: torch.randn(*s, dtype=torch.bfloat16) * 0.05)(B, H, Sk, Dh)),
        "wq": _w((lambda *s: torch.randn(*s, dtype=torch.bfloat16) * 0.8)(D, H * Dh) * (D ** -0.5)),
        "wo": _w((lambda *s: torch.randn(*s, dtype=torch.bfloat16) * 0.05)(H * Dh, D) * ((H * Dh) ** -0.5)),
    }

def reference(x, k_cache, v_cache, wq, wo):
    B, Sq, D = x.shape
    H, Dh = 32, 128
    q = (lambda x, *d: x.permute(*d))((x @ wq).reshape(B, Sq, H, Dh), 0, 2, 1, 3)
    scores = torch.einsum("bhqd,bhkd->bhqk", q, k_cache) * (Dh ** -0.5)
    p = _softmax(scores, axis=-1)
    o = torch.einsum("bhqk,bhkd->bhqd", p, v_cache)
    return (lambda x, *d: x.permute(*d))(o, 0, 2, 1, 3).reshape(B, Sq, H * Dh) @ wo
```

```python
import re

TRANS = ("v_exp_f32", "v_log_f32", "v_rcp_f32", "v_rsq_f32", "v_sqrt_f32", "v_sin_f32", "v_cos_f32")
_reg_re = re.compile(r"^-?(?:abs\()?([vas])(\d+)\)?$")
_rng_re = re.compile(r"^-?([vas])\[(\d+):(\d+)\]$")


def regs_of(op):
    op = op.strip()
    m = _reg_re.match(op)
    if m:
        return [m.group(1) + m.group(2)]
    m = _rng_re.match(op)
    if m:
        return [m.group(1) + str(i) for i in range(int(m.group(2)), int(m.group(3)) + 1)]
    if op in ("vcc", "m0", "exec"):
        return [op]
    return []


class Ins:
    def __init__(self, text, tag=None, aside=False, waittags=None, lgkm0=False, vm0=False):
        self.text = text
        self.tag = tag
        self.aside = aside
        self.waittags = waittags
        self.lgkm0 = lgkm0
        self.vm0 = vm0
        self.kind = None
        self.rd, self.wr, self.srcc, self.ab = set(), set(), set(), set()
        self.states = 1
        self.widestore = set()
        if text is not None and not aside:
            self.parse()

    def parse(self):
        t = self.text.split(";")[0].strip()
        if not t or t.endswith(":") or t.startswith("."):
            self.kind = "label"
            self.states = 0
            return
        sp = t.split(None, 1)
        op = sp[0]
        self.op = op
        rest = sp[1] if len(sp) > 1 else ""
        ops = [o.strip() for o in rest.split(",")]
        if ops:
            last = ops[-1].split()
            mods = last[1:]
            ops[-1] = last[0] if last else ""
        else:
            mods = []
        cut = []
        for o in [x.strip() for x in rest.split(",")]:
            w = o.split()
            if not w:
                continue
            cut.append(w[0])
            if len(w) > 1:
                break
        ops = cut
        R = [regs_of(o) for o in ops]
        allr = lambda l: set(r for x in l for r in x)
        words = rest.replace(",", " ").split()
        if op.startswith("v_mfma"):
            self.kind = "mfma"
            self.wr = set(R[0]); self.ab = allr(R[1:3]); self.srcc = set(R[3]); self.rd = self.ab | self.srcc
        elif op.startswith("ds_read"):
            self.kind = "ds"; self.wr = set(R[0]); self.rd = allr(R[1:])
        elif op.startswith("ds_"):
            self.kind = "ds"; self.rd = allr(R)
        elif op.startswith("buffer_load") or op.startswith("global_load"):
            self.kind = "vmem"
            if "lds" in words:
                self.rd = allr(R) | {"m0"}; self.dma = True
            else:
                self.wr = set(R[0]); self.rd = allr(R[1:])
        elif op.startswith("buffer_store") or op.startswith("buffer_atomic"):
            self.kind = "vmem"; self.rd = allr(R)
            if op.endswith("x4") or op.endswith("x3"):
                self.widestore = set(R[0])
        elif op.startswith("v_permlane"):
            self.kind = "valu"; self.rd = allr(R); self.wr = allr(R); self.permlane = True
        elif op.startswith("v_"):
            self.kind = "valu"
            self.wr = set(R[0]); self.rd = allr(R[1:])
            if op.startswith("v_fmac"):
                self.rd |= self.wr
            if any(op.startswith(x) for x in TRANS):
                self.trans = True
        elif op == "s_nop":
            self.kind = "nop"; self.states = int(ops[0]) + 1
        elif op in ("s_waitcnt", "s_barrier", "s_endpgm", "s_setprio") or op.startswith("s_cbranch") or op == "s_branch":
            self.kind = "sctl"
            if "vcc" in op:
                self.rd = {"vcc"}
        elif op.startswith("s_cmp") or op.startswith("s_setpc") or op.startswith("s_bitcmp"):
            self.kind = "salu"; self.rd = allr(R)
        elif op.startswith("s_load") or op.startswith("s_memrealtime") or op.startswith("s_memtime"):
            self.kind = "smem"; self.wr = set(R[0]); self.rd = allr(R[1:])
        elif op.startswith("s_"):
            self.kind = "salu"; self.wr = set(R[0]); self.rd = allr(R[1:])
        else:
            raise ValueError("unknown instruction " + t)

    def is_(self, name):
        return getattr(self, name, False)


def isv(r):
    return r[0] in "va" and r != "vcc"


def need_states(p, c):
    n = 0
    if p.kind == "valu":
        wv = set(r for r in p.wr if isv(r))
        ws = p.wr - wv
        if c.kind == "mfma" and wv & c.rd:
            n = max(n, 2)
        if c.kind == "valu":
            if p.is_("trans") and not c.is_("trans") and wv & c.rd:
                n = max(n, 1)
            if c.is_("permlane") and wv & c.rd:
                n = max(n, 2)
            if (c.op.startswith("v_readfirstlane") or c.op.startswith("v_readlane")) and wv & c.rd:
                n = max(n, 1)
            if ws & c.rd:
                n = max(n, 2)
        if c.kind == "vmem" and ws & c.rd:
            n = max(n, 5)
        if c.kind in ("salu", "sctl") and ws & c.rd:
            n = max(n, 1)
    elif p.kind == "mfma":
        if c.kind in ("valu", "ds", "vmem") and p.wr & (c.rd | c.wr):
            n = max(n, 12)
        if c.kind == "mfma":
            if p.wr & c.ab:
                n = max(n, 12)
            if p.wr & c.srcc and p.wr != c.srcc:
                n = max(n, 10)
            if p.wr & c.wr and p.wr != c.srcc:
                n = max(n, 10)
        if c.kind == "valu" and p.srcc & c.wr:
            n = max(n, 7)
    elif p.kind == "salu":
        if "m0" in p.wr and c.is_("dma"):
            n = max(n, 1)
    elif p.kind == "vmem":
        if p.widestore & c.wr:
            n = max(n, 2)
    return n


class Prog:
    def __init__(self):
        self.ins = []

    def e(self, text, tag=None):
        for line in text.strip().split("\n"):
            line = line.strip()
            if line:
                self.ins.append(Ins(line, tag=tag))

    def add(self, x):
        if isinstance(x, str):
            self.e(x)
        elif isinstance(x, Ins):
            self.ins.append(x)
        else:
            for y in x:
                self.add(y)

    def finalize(self):
        out = []
        ds = []
        vm = []
        stats = dict(nops=0, lgkm=0, vmw=0, maxvm=0)

        def emit(i):
            need = 0
            dist = 0
            for p in reversed(out):
                if p.aside:
                    continue
                if dist >= 12:
                    break
                need = max(need, need_states(p, i) - dist)
                dist += p.states
            if need > 0:
                out.append(Ins(f"s_nop {need-1}"))
                stats["nops"] += need
            out.append(i)

        def wait(nvm=None, nds=None):
            parts = []
            if nvm is not None:
                assert nvm <= 63
                parts.append(f"vmcnt({nvm})")
                del vm[:len(vm) - nvm]
                stats["vmw"] += 1
            if nds is not None:
                assert nds <= 15
                parts.append(f"lgkmcnt({nds})")
                del ds[:len(ds) - nds]
                stats["lgkm"] += 1
            if parts:
                out.append(Ins("s_waitcnt " + " ".join(parts)))

        for i in self.ins:
            if i.aside:
                out.append(i)
                continue
            nvm = nds = None
            if i.text is None:
                if i.waittags is not None:
                    idx = [k for k, (t, _) in enumerate(vm) if t in i.waittags]
                    if idx:
                        nvm = len(vm) - 1 - max(idx)
                if i.vm0 and vm:
                    nvm = 0
                if i.lgkm0 and ds:
                    nds = 0
                wait(nvm, nds)
                continue
            touched = i.rd | i.wr
            idx = [k for k, d in enumerate(ds) if d & touched]
            if idx:
                nds = len(ds) - 1 - max(idx)
            idx = [k for k, (_, d) in enumerate(vm) if d & touched]
            if idx:
                nvm = len(vm) - 1 - max(idx)
            if i.kind == "ds" and (len(ds) if nds is None else nds) >= 15:
                nds = 14
            if i.kind == "vmem" and (len(vm) if nvm is None else nvm) >= 63:
                nvm = 62
            wait(nvm, nds)
            if i.kind == "sctl" and i.op == "s_waitcnt":
                m = re.search(r"vmcnt\((\d+)\)", i.text)
                if m:
                    n = int(m.group(1)); del vm[:max(0, len(vm) - n)]
                m = re.search(r"lgkmcnt\((\d+)\)", i.text)
                if m:
                    n = int(m.group(1)); del ds[:max(0, len(ds) - n)]
            emit(i)
            if i.kind == "ds":
                ds.append(set(i.wr))
            elif i.kind == "vmem":
                vm.append((i.tag, set(i.wr)))
                stats["maxvm"] = max(stats["maxvm"], len(vm))
        self.out = out
        self.stats = stats
        return "\n".join(("" if x.kind == "label" or (x.aside and x.text.rstrip().endswith(":")) else "  ") + x.text for x in out) + "\n"


def W(*tags, lgkm0=False, vm0=False):
    return Ins(None, waittags=set(tags), lgkm0=lgkm0, vm0=vm0)


def aside(text):
    return [Ins(l.strip(), aside=True) for l in text.strip().split("\n") if l.strip()]


def T(text, tag):
    return [Ins(l.strip(), tag=tag) for l in text.strip().split("\n") if l.strip()]


class Timeline:
    def __init__(self):
        self.m = []
        self.fill = {}
        self.seq = 0

    def mfma(self, text):
        self.m.append(text)
        return len(self.m) - 1

    def at(self, gap, x, prio=50):
        gap = max(gap, -1)
        self.seq += 1
        self.fill.setdefault(gap, []).append((prio, self.seq, x))

    def flush(self, prog):
        for k in range(-1, len(self.m)):
            if k >= 0:
                prog.add(self.m[k])
            for _, _, x in sorted(self.fill.get(k, []), key=lambda z: (z[0], z[1])):
                prog.add(x)
        assert all(k < len(self.m) for k in self.fill)
```

```python
import sys, struct, math
from asmlib import Prog, Timeline, W, aside, T, Ins

NAME = "standalone__mha_block_cached__near_ridge_kernel"

HEADER = """; Kernarg layout for this problem (64 bytes, ptrs only, base s[0:1]):
; @launch grid=(256,1,1) block=(256,1,1) lds=163840
"""


def f2u(x):
    return struct.unpack("<I", struct.pack("<f", x))[0]


VO = 0
VACC = 64
VS = 128
VNEGM = 160
VP = 176
VKRD = 192
VTR = 200
VKD = 212
VVD = 216
VWD = 217
VXD = 221
VXR = 225
VFR = 229
VOUT = 230
VFL = 231
VL0, VL1, VMX0, VMX1 = 232, 233, 234, 235
VT = 236
VPOLL = 248
VZ = 249
VDUM = 250
AQ = [0, 32]
AF = 64
NF = 16
AB = 128

SX, SK, SV, SWQ, SWO, SOUT, SDBG, SWS = 8, 12, 16, 20, 24, 28, 32, 36
sW, sB, sG, sI, sROT, sLW, sKV, sXB, sWQB = 40, 41, 42, 43, 44, 45, 46, 47, 48
sT0, sT1, sT2, sT3 = 49, 50, 51, 52
sSOX, sSOW, sSOK = 53, 54, 55
sHB = 56
sRET = 60
sSPIN, sTHR, sC = 62, 63, 64
sFO, sFP, sOOWN = 66, 67, 68
sOP = 69
sPS = 72
sPR = 75
sOUTO = 78
sSTAMP = 80
sTM = 96

OOB = 0x7F000000
WS_FO, WS_FP, WS_O = 0, 32768, 65536
WS_P = WS_O + 2 * 256 * 4 * 7168
WS_STAMP = 0x2000000
WS_SIZE = 0x2100000

KSLOT, VSLOT, WRING, XSLOT = [4, 5, 6], [0, 1, 2], [2, 3, 6, 7], [8, 9]
TSLOT = [3, 7, 8, 9, 5, 1, 6, 2, 4, 0, 3, 7, 8, 9, 5, 1]


def srd(n):
    return f"s[{n}:{n+3}]"


def v(n, k=1):
    return f"v{n}" if k == 1 else f"v[{n}:{n+k-1}]"


def a(n, k=1):
    return f"a{n}" if k == 1 else f"a[{n}:{n+k-1}]"


def fq(item):
    return AF + 4 * (item % NF)


class Gen:
    def __init__(self, stamps=False, p32=False, kvflag=" nt", wflag="", xflag="", thr=8.0, **opt):
        self.stamps = stamps
        self.p32 = p32
        self.kvflag, self.wflag, self.xflag = kvflag, wflag, xflag
        self.thr = thr
        self.opt = opt
        self.nlab = 0
        self.nstamp = 0
        self.stampnames = []

    def lab(self, s):
        self.nlab += 1
        return f"L_{s}_{self.nlab}"

    def stamp(self, name):
        if not self.stamps:
            return []
        k = self.nstamp
        self.nstamp += 1
        self.stampnames.append(name)
        assert k < 16
        return [W(lgkm0=True), Ins(f"s_memrealtime s[{sTM}:{sTM+1}]"), Ins("s_waitcnt lgkmcnt(0)"),
                Ins(f"s_mov_b32 s{sSTAMP+k}, s{sTM}")]

    def dma_tile(self, slot, voffs, srdn, soff, flag, tag, pre=""):
        pieces = []
        for jj in range(4):
            x = []
            if jj == 0:
                if pre:
                    x += [Ins(l) for l in pre.strip().split("\n")]
                x.append(Ins(f"s_add_u32 m0, s{sLW}, {slot*16384}"))
            vo = voffs[jj] if isinstance(voffs, list) else voffs
            x.append(Ins(f"buffer_load_dwordx4 v{vo}, {srd(srdn)}, s{soff} offen offset:{jj*1024}{flag} lds", tag=tag))
            pieces.append(x)
        return pieces

    def dma_x(self, p):
        pre = f"s_add_u32 s{sT0}, s{sROT}, {p}\ns_and_b32 s{sT0}, s{sT0}, 7\ns_lshl_b32 s{sT0}, s{sT0}, 7\ns_add_u32 s{sSOX}, s{sT0}, s{sXB}"
        return self.dma_tile(XSLOT[p & 1], [VXD + j for j in range(4)], SX, sSOX, self.xflag, f"X{p}", pre)

    def dma_wq(self, n):
        p, sel = n >> 1, n & 1
        if sel == 0:
            pre = f"s_add_u32 s{sT0}, s{sROT}, {p}\ns_and_b32 s{sT0}, s{sT0}, 7\ns_lshl_b32 s{sT0}, s{sT0}, 19\ns_add_u32 s{sSOW}, s{sT0}, s{sWQB}"
        else:
            pre = f"s_add_u32 s{sSOW}, s{sSOW}, 256"
        return self.dma_tile(WRING[n % 4], [VWD + j for j in range(4)], SWQ, sSOW, self.wflag, f"W{n}", pre)

    def dma_k(self, s):
        pre = f"s_add_u32 s{sSOK}, s{sKV}, {s*16384}"
        return self.dma_tile(KSLOT[s % 3], [VKD + j for j in range(4)], SK, sSOK, self.kvflag, f"K{s}", pre)

    def dma_v(self, s):
        pre = f"s_add_u32 s{sSOK}, s{sKV}, {s*16384}"
        return self.dma_tile(VSLOT[s % 3], VVD, SV, sSOK, self.kvflag, f"V{s}", pre)

    def t_info(self, n):
        if n < 2: return 0, 0
        if n < 4: return 0, 1
        if n < 10: return 1 + (n - 4) // 2, 0
        return 1 + (n - 10) // 2, 1

    def dma_wo(self, n):
        j, u = self.t_info(n)
        pre = f"s_add_u32 s{sSOW}, s{sHB+j}, {u*131072 + (n & 1)*65536}"
        return self.dma_tile(TSLOT[n], [VWD + jj for jj in range(4)], SWO, sSOW, self.wflag, f"T{n}", pre)

    def tr_reads(self, item, slot, ks, db):
        r = fq(item)
        adr = VTR + 4 * (slot >> 2) + db
        off = (slot & 3) * 16384 + ks * 4096
        return [f"ds_read_b64_tr_b16 {a(r,2)}, v{adr} offset:{off}",
                f"ds_read_b64_tr_b16 {a(r+2,2)}, v{adr} offset:{off+1024}"]

    def poll_issue(self, srdn, voff, soff):
        return Ins(f"buffer_load_dword v{VPOLL}, v{voff}, {srd(srdn)}, s{soff} offen sc1", tag="poll")

    def poll_check(self, srdn, voff, soff, need):
        ok, sp = self.lab("ok"), self.lab("spin")
        x = [Ins(f"v_cmp_gt_u32 vcc, {need}, v{VPOLL}"), Ins(f"s_cbranch_vccz {ok}")]
        x += aside(f"""
            s_mov_b32 s{sSPIN}, 0x40000
            {sp}:
            buffer_load_dword v{VPOLL}, v{voff}, {srd(srdn)}, s{soff} offen sc1
            s_waitcnt vmcnt(0)
            v_cmp_gt_u32 vcc, {need}, v{VPOLL}
            s_sub_u32 s{sSPIN}, s{sSPIN}, 1
            s_cmp_eq_u32 s{sSPIN}, 0
            s_cbranch_scc1 {ok}
            s_cbranch_vccnz {sp}
            """)
        x.append(Ins(f"{ok}:"))
        return x

    def flag_store(self, soff, sidx, val):
        return [Ins(f"v_mov_b32 v{VT+10}, {val}"), Ins(f"s_lshl_b32 s{sT1}, s{sidx}, 2"), Ins(f"s_add_u32 s{sT1}, s{sT1}, s{soff}"),
                Ins("s_mov_b64 exec, 1"),
                Ins(f"buffer_store_dword v{VT+10}, v{VZ}, {srd(SWS)}, s{sT1} offen sc1", tag="flag"),
                Ins("s_mov_b64 exec, -1")]

    def frag_ops(self, op, regs, soff, extra, tag, nfr=8):
        x = []
        for f in range(nfr):
            if f % 4 == 0:
                x.append(Ins(f"s_add_u32 s{sT2}, s{soff}, {extra + f*896}"))
            x.append(Ins(f"{op} {regs(f)}, v{VFR}, {srd(SWS)}, s{sT2} offen offset:{(f % 4)*896} sc1", tag=tag))
        return x

    def qcvt(self, acc, dst):
        x = []
        for k in range(32):
            r = acc + 2 * k
            t = VT + 4 + (k & 3)
            x.append([f"v_pk_mul_f32 {v(r,2)}, {v(r,2)}, s[{sC}:{sC+1}]",
                      f"v_cvt_pk_bf16_f32 v{t}, v{r}, v{r+1}",
                      f"v_accvgpr_write_b32 a{dst+k}, v{t}"])
        return x

    def normalize(self, dstv):
        x = [f"v_add_f32 v{VT}, v{VL0}, v{VL1}",
             f"v_mov_b32 v{VT+1}, v{VT}",
             f"v_permlane32_swap_b32 v{VT}, v{VT+1}",
             f"v_add_f32 v{VT}, v{VT}, v{VT+1}",
             f"v_rcp_f32 v{VT}, v{VT}"]
        for k in range(32):
            r = VO + 2 * k
            x.append(f"v_pk_mul_f32 {v(r,2)}, {v(r,2)}, {v(VT,2)} op_sel_hi:[1,0]")
            x.append(f"v_cvt_pk_bf16_f32 v{dstv+k}, v{r}, v{r+1}")
        return x

    def setup(self, P):
        e = P.e
        e(f"s_cmp_ge_u32 s2, 256\ns_cbranch_scc1 L_end")
        e(f"s_load_dwordx16 s[{80}:{95}], s[0:1], 0")
        if self.stamps:
            e(f"s_memrealtime s[98:99]")
        e(f"""
            v_lshrrev_b32 v1, 6, v0
            v_and_b32 v2, 63, v0
            v_readfirstlane_b32 s{sW}, v1
            s_and_b32 s{sG}, s2, 3
            s_lshr_b32 s{sT0}, s2, 3
            s_and_b32 s{sI}, s{sT0}, 3
            s_lshr_b32 s{sT1}, s{sT0}, 2
            s_lshl_b32 s{sB}, s2, 1
            s_and_b32 s{sB}, s{sB}, 8
            s_add_u32 s{sB}, s{sB}, s{sT1}
            s_lshl_b32 s{sROT}, s{sI}, 1
            s_add_u32 s{sROT}, s{sROT}, s{sT1}
            s_and_b32 s{sROT}, s{sROT}, 7
            s_lshl_b32 s{sLW}, s{sW}, 12
            s_lshl_b32 s{sT2}, s{sG}, 2
            s_add_u32 s{sT2}, s{sT2}, s{sI}
            s_lshl_b32 s{sWQB}, s{sT2}, 9
            s_lshl_b32 s{sT3}, s{sB}, 4
            s_add_u32 s{sT3}, s{sT3}, s{sT2}
            s_lshl_b32 s{sKV}, s{sT3}, 18
            s_mul_i32 s{sXB}, s{sB}, 114688
        """)
        e(f"""
            v_lshrrev_b32 v3, 4, v2
            v_and_b32 v4, 15, v2
            v_lshlrev_b32 v5, 2, v3
            v_xor_b32 v5, v5, v4
            v_lshl_add_u32 v6, v1, 4, v3
        """)
        e(f"""
            v_lshrrev_b32 v7, 3, v2
            v_mad_u32_u24 v7, v1, 28, v7
            v_lshlrev_b32 v7, 10, v7
            v_and_b32 v8, 7, v2
            v_xor_b32 v8, v8, v3
            v_lshl_add_u32 v{VXD}, v8, 4, v7
            v_xor_b32 v8, 4, v8
            v_lshl_add_u32 v9, v8, 4, v7
            v_add_u32 v{VXD+1}, {7*1024}, v9
            v_add_u32 v{VXD+2}, {14*1024}, v{VXD}
            v_add_u32 v9, {21*1024}, v9
            v_mov_b32 v10, {OOB}
            v_cmp_gt_u32 vcc, 32, v2
            v_cndmask_b32 v{VXD+3}, v10, v9, vcc
        """)
        e(f"""
            v_lshlrev_b32 v7, 13, v6
            v_lshl_add_u32 v{VWD}, v5, 4, v7
            v_add_u32 v{VWD+1}, {32768-1024}, v{VWD}
            v_add_u32 v{VWD+2}, {2*(32768-1024)}, v{VWD}
            v_add_u32 v{VWD+3}, {3*(32768-1024)}, v{VWD}
        """)
        e(f"""
            s_getpc_b64 s[{sTM}:{sTM+1}]
            L_pc0:
            s_sub_u32 s{sTM}, s{sTM}, L_pc0-{NAME}
            s_subb_u32 s{sTM+1}, s{sTM+1}, 0
            s_lshl_b32 s{sT1}, s{sT0}, 11
            v_and_b32 v7, 3, v2
            v_lshl_add_u32 v7, v1, 2, v7
            v_lshl_add_u32 v7, v7, 7, s{sT1}
            v_min_u32 v7, L_codeend-{NAME}-4, v7
        """)
        e("s_waitcnt lgkmcnt(0)")
        sizes = [(SX, 1835008), (SK, 67108864), (SV, 67108864), (SWQ, 4194304), (SWO, 4194304), (SOUT, 1835008), (SDBG, 256), (SWS, WS_SIZE)]
        def mksrd(k):
            n, sz = sizes[k]
            e(f"s_mov_b64 s[{n}:{n+1}], s[{80+2*k}:{81+2*k}]\ns_mov_b32 s{n+2}, {sz}\ns_mov_b32 s{n+3}, 0x20000")
        mksrd(0); mksrd(3)
        P.add(self.dma_x(0)); P.add(self.dma_wq(0))
        e(f"global_load_dword v{VDUM}, v7, s[{sTM}:{sTM+1}]", tag="pf")
        P.add(self.dma_wq(1))
        for k in (1, 2, 4, 5, 6, 7):
            mksrd(k)
        if self.stamps:
            e(f"s_mov_b32 s{sSTAMP}, s98")
            self.nstamp = 1; self.stampnames.append("start")
        e(f"""
            v_and_b32 v11, 31, v2
            v_lshrrev_b32 v12, 5, v2
            v_mov_b32 v{VZ}, 0
        """)
        e(f"""
            s_lshl_b32 s{sT0}, s{sB}, 2
            s_add_u32 s{sT1}, s{sT0}, s{sG}
            s_lshl_b32 s{sT1}, s{sT1}, 2
            s_add_u32 s{sT1}, s{sT1}, s{sW}
            s_lshl_b32 s{sFO}, s{sT1}, 7
            s_add_u32 s{sT1}, s{sT0}, s{sI}
            s_lshl_b32 s{sT1}, s{sT1}, 2
            s_add_u32 s{sT1}, s{sT1}, s{sW}
            s_lshl_b32 s{sT1}, s{sT1}, 7
            s_add_u32 s{sFP}, s{sT1}, {WS_FP}
            s_lshl_b32 s{sT0}, s{sI}, 2
            s_add_u32 s{sT0}, s{sT0}, s{sFO}
            s_lshl_b32 s{sT1}, s{sG}, 2
            s_add_u32 s{sT1}, s{sT1}, s{sFP}
            v_mov_b32 v7, s{sT0}
            v_mov_b32 v8, s{sT1}
            v_cmp_eq_u32 vcc, 0, v2
            v_cndmask_b32 v7, v8, v7, vcc
            s_mov_b64 exec, 3
        """)
        e(f"buffer_store_dword v{VZ}, v7, {srd(SWS)}, 0 offen sc1", tag="clr")
        e("s_mov_b64 exec, -1")
        e(f"""
            v_lshrrev_b32 v7, 1, v11
            v_and_b32 v7, 7, v7
            v_xor_b32 v7, v7, v12
            v_lshlrev_b32 v8, 7, v11
            v_lshl_add_u32 v8, v1, 12, v8
            v_add_u32 v8, {XSLOT[0]*16384}, v8
        """)
        for ks in range(4):
            e(f"v_xor_b32 v9, {2*ks}, v7\nv_lshl_add_u32 v{VXR+ks}, v9, 4, v8")
        e(f"""
            v_bfe_u32 v7, v2, 2, 2
            v_lshl_add_u32 v8, v12, 3, v7
            v_lshlrev_b32 v8, 8, v8
            v_bfe_u32 v9, v2, 4, 1
            v_lshl_add_u32 v8, v9, 5, v8
            v_and_b32 v9, 1, v2
            v_lshl_add_u32 v8, v9, 4, v8
            v_bfe_u32 v9, v2, 1, 1
            v_lshl_add_u32 v8, v9, 3, v8
        """)
        for db in range(4):
            e(f"v_xor_b32 v9, {db}, v7\nv_lshl_add_u32 v{VTR+db}, v9, 6, v8")
            e(f"v_add_u32 v{VTR+4+db}, 0x10000, v{VTR+db}\nv_add_u32 v{VTR+8+db}, 0x20000, v{VTR+db}")
        e(f"v_lshlrev_b32 v7, 8, v6\nv_lshl_add_u32 v{VVD}, v5, 4, v7\nv_xor_b32 v8, v4, v3")
        for jj in range(4):
            e(f"v_xor_b32 v9, {4*jj}, v8\nv_lshl_add_u32 v{VKD+jj}, v9, 4, v7")
        e(f"""
            v_and_b32 v7, 0x13, v11
            v_bfe_u32 v8, v11, 2, 1
            v_lshl_add_u32 v7, v8, 3, v7
            v_bfe_u32 v8, v11, 3, 1
            v_lshl_add_u32 v7, v8, 2, v7
            v_and_b32 v8, 15, v7
            v_xor_b32 v8, v8, v12
            v_lshlrev_b32 v7, 8, v7
            v_add_u32 v7, {KSLOT[0]*16384}, v7
        """)
        for s in range(8):
            e(f"v_xor_b32 v9, {2*s}, v8\nv_lshl_add_u32 v{VKRD+s}, v9, 4, v7")
        e(f"""
            v_mad_u32_u24 v7, v12, 28, v11
            v_lshlrev_b32 v7, 4, v7
            v_mad_u32_u24 v8, v1, 28, v11
            v_lshlrev_b32 v8, 10, v8
            v_lshl_add_u32 v8, v12, 4, v8
            v_cmp_gt_u32 vcc, 28, v11
            v_cndmask_b32 v{VFR}, v10, v7, vcc
            v_cndmask_b32 v{VOUT}, v10, v8, vcc
            v_and_b32 v7, 3, v2
            v_lshlrev_b32 v{VFL}, 2, v7
        """)
        e(f"v_mov_b32 v{VT+8}, v6\nv_mov_b32 v{VT+9}, v5")
        c = math.log2(math.e) / math.sqrt(128.0)
        e(f"s_mov_b32 s{sC}, {f2u(c)}\ns_mov_b32 s{sC+1}, {f2u(c)}\ns_mov_b32 s{sTHR}, {f2u(self.thr)}")
        PB = 3584 if self.p32 else 1792
        e(f"""
            s_lshl_b32 s{sT0}, s{sT3}, 2
            s_add_u32 s{sT0}, s{sT0}, s{sW}
            s_mul_i32 s{sT0}, s{sT0}, 7168
            s_add_u32 s{sOOWN}, s{sT0}, {WS_O}
            s_lshl_b32 s{sT0}, s{sG}, 6
            s_lshl_b32 s{sT1}, s{sI}, 8
            s_add_u32 s{sT0}, s{sT0}, s{sT1}
            s_add_u32 s{sOUTO}, s{sT0}, s{sXB}
        """)
        for j in range(4):
            e(f"""
                s_add_u32 s{sT0}, s{sI}, {j}
                s_and_b32 s{sT0}, s{sT0}, 3
                s_lshl_b32 s{sT1}, s{sG}, 2
                s_add_u32 s{sT1}, s{sT1}, s{sT0}
                s_lshl_b32 s{sT2}, s{sT1}, 18
                s_lshl_b32 s{sHB+j}, s{sI}, 8
                s_add_u32 s{sHB+j}, s{sHB+j}, s{sT2}
            """)
            if j:
                e(f"""
                    s_sub_i32 s{sT0}, s{sT0}, s{sI}
                    s_mul_i32 s{sT0}, s{sT0}, {4*7168}
                    s_add_i32 s{sOP+j-1}, s{sOOWN}, s{sT0}
                """)
        e(f"s_lshl_b32 s{sT3}, s{sB}, 2\ns_add_u32 s{sT3}, s{sT3}, s{sI}\ns_lshl_b32 s{sT3}, s{sT3}, 6\ns_add_u32 s{sT3}, s{sT3}, s{sW}")
        for be in range(3):
            e(f"""
                s_add_u32 s{sT0}, s{sG}, {be+1}
                s_and_b32 s{sT0}, s{sT0}, 3
                s_lshl_b32 s{sT1}, s{sT0}, 2
                s_add_u32 s{sT1}, s{sT1}, s{sG}
                s_lshl_b32 s{sT1}, s{sT1}, 2
                s_add_u32 s{sT1}, s{sT1}, s{sT3}
                s_mul_i32 s{sT1}, s{sT1}, {PB}
                s_add_u32 s{sPS+be}, s{sT1}, {WS_P}
                s_lshl_b32 s{sT1}, s{sG}, 2
                s_add_u32 s{sT1}, s{sT1}, s{sT0}
                s_lshl_b32 s{sT1}, s{sT1}, 2
                s_add_u32 s{sT1}, s{sT1}, s{sT3}
                s_mul_i32 s{sT1}, s{sT1}, {PB}
                s_add_u32 s{sPR+be}, s{sT1}, {WS_P}
            """)

    def wo_offsets(self):
        x = [f"s_add_u32 s{sT0}, s{sG}, 1", f"s_lshl_b32 s{sT0}, s{sT0}, 2",
             f"v_add_u32 v{VT+9}, s{sT0}, v{VT+9}", f"v_and_b32 v{VT+9}, 15, v{VT+9}",
             f"v_lshlrev_b32 v{VT+8}, 10, v{VT+8}",
             f"v_lshl_add_u32 v{VWD}, v{VT+9}, 4, v{VT+8}"]
        for jj in range(1, 4):
            x.append(f"v_add_u32 v{VWD+jj}, {jj*3072}, v{VWD}")
        return x

    def build(self):
        P = Prog()
        P.e(f"{NAME}:")
        self.setup(P)
        TL = Timeline()
        MF = "v_mfma_f32_32x32x16_bf16"
        LA = 4

        def spread(pieces, gaps, prio=60):
            assert len(pieces) == len(gaps), (len(pieces), len(gaps))
            for pc, g_ in zip(pieces, gaps):
                TL.at(g_, pc, prio)

        kvq = {3: self.dma_k(0), 6: self.dma_v(0), 9: self.dma_k(1), 12: self.dma_v(1)}
        for n in range(16):
            p, sel = n >> 1, n & 1
            base = 16 * n
            acc = VO if sel == 0 else VACC
            xf = AB + 16 * (p & 1)
            bg = base - 5
            tags = [f"W{n}"] + ([f"X{p}"] if sel == 0 else []) + (["clr"] if n == 2 else [])
            TL.at(bg, [W(*tags), "s_barrier"], prio=90)
            if n == 0:
                TL.at(bg, self.stamp("P0"), prio=91)
            if n == 2:
                sk = self.lab("noadd")
                TL.at(bg, [f"s_lshl_b32 s{sT1}, s{sB}, 2", f"v_mov_b32 v{VT+10}, 1", f"s_cmp_lg_u32 s{sW}, 0", f"s_cselect_b32 s{sT1}, {OOB}, s{sT1}",
                           f"v_mov_b32 v{VT+11}, s{sT1}",
                           "s_mov_b64 exec, 1",
                           Ins(f"buffer_atomic_add v{VT+10}, v{VT+11}, {srd(SDBG)}, 0 offen", tag="atom"),
                           "s_mov_b64 exec, -1"], prio=92)
            for m in range(16):
                ks, nb = m >> 2, m & 3
                item = base + m
                c = "0" if (p == 0 and ks == 0) else v(acc + 16 * nb, 16)
                TL.mfma(f"{MF} {v(acc+16*nb,16)}, {a(fq(item),4)}, {a(xf+4*ks,4)}, {c}")
                TL.at(item - LA, self.tr_reads(item, WRING[n % 4], ks, nb), prio=95 if item - LA <= -1 else 40)
            if sel == 0:
                for ks in range(4):
                    g_ = base - 4 + ks
                    TL.at(g_, f"ds_read_b128 {a(xf+4*ks,4)}, v{VXR+ks} offset:{(p & 1)*16384}", prio=94 if g_ <= -1 else 39)
            pcs = []
            if n + 2 < 16:
                if (n + 2) % 2 == 0:
                    pcs += self.dma_x((n + 2) >> 1)
                pcs += self.dma_wq(n + 2)
            pcs += kvq.get(n, [])
            gaps = [max(base - 4 + k, 0) if n == 0 else base - 4 + k for k in range(len(pcs))]
            spread(pcs, gaps)
        q1 = self.qcvt(VO, AQ[0])
        for k, x in enumerate(q1):
            TL.at(240 + 2 + (k * 14) // 32, x, prio=70)
        TL.at(255, self.stamp("Pend"), prio=99)

        for s in range(16):
            u, t = s >> 3, s & 7
            base = 256 + 32 * s
            bg = base - 5
            tags = [f"K{s}", f"V{s}"]
            TL.at(bg, [W(*tags, lgkm0=(s > 0)), "s_barrier"], prio=90)
            koff = (KSLOT[s % 3] - KSLOT[0]) * 16384
            for m in range(16):
                kb, st = m >> 3, m & 7
                item = base + m
                d = v(VS + 16 * kb, 16)
                c = d if st else ("0" if t == 0 else v(VNEGM, 16))
                TL.mfma(f"{MF} {d}, {a(fq(item),4)}, {a(AQ[u]+4*st,4)}, {c}")
                TL.at(item - LA, f"ds_read_b128 {a(fq(item),4)}, v{VKRD+st} offset:{koff + kb*8192}", prio=40)
            for m in range(16):
                ks, db = m >> 2, m & 3
                item = base + 16 + m
                d = v(VO + 16 * db, 16)
                c = "0" if (t == 0 and ks == 0) else d
                TL.mfma(f"{MF} {d}, {a(fq(item),4)}, {v(VP+4*ks,4)}, {c}")
                TL.at(item - 12, self.tr_reads(item, VSLOT[s % 3], ks, db), prio=41)
            def maxchain(dst, r0):
                x = [f"v_max3_f32 v{dst}, v{r0}, v{r0+1}, v{r0+2}"]
                for k in range(3, 15, 2):
                    x.append(f"v_max3_f32 v{dst}, v{dst}, v{r0+k}, v{r0+k+1}")
                return x
            m0 = maxchain(VMX0, VS)
            for k, x in enumerate(m0):
                TL.at(base + 11 + k // 2, x, prio=50)
            blk = maxchain(VMX1, VS + 16)
            blk.append(f"v_max3_f32 v{VMX0}, v{VMX0}, v{VS+15}, v{VS+31}")
            blk.append(f"v_max_f32 v{VMX0}, v{VMX0}, v{VMX1}")
            if t == 0:
                blk += [f"v_mov_b32 v{VMX1}, v{VMX0}", f"v_permlane32_swap_b32 v{VMX0}, v{VMX1}",
                        f"v_max_f32 v{VMX0}, v{VMX0}, v{VMX1}"]
                for k in range(16):
                    blk.append(f"v_pk_add_f32 {v(VS+2*k,2)}, {v(VS+2*k,2)}, {v(VMX0,2)} op_sel_hi:[1,0] neg_lo:[0,1] neg_hi:[0,1]")
                for k in range(16):
                    TL.at(base + 28 + k // 4, f"v_sub_f32 v{VNEGM+k}, 0, v{VMX0}", prio=55)
            else:
                sk = self.lab("nors")
                blk += [f"v_cmp_lt_f32 vcc, s{sTHR}, v{VMX0}", f"s_cbranch_vccz {sk}"]
                blk += aside(f"s_call_b64 s[{sRET}:{sRET+1}], L_rescale")
                blk.append(f"{sk}:")
            def ex(ks):
                r = VS + 8 * ks
                x = []
                for k in range(4):
                    x.append([f"v_exp_f32 v{r+2*k}, v{r+2*k}", f"v_exp_f32 v{r+2*k+1}, v{r+2*k+1}"])
                cv = [f"v_cvt_pk_bf16_f32 v{VP+4*ks+k}, v{r+2*k}, v{r+2*k+1}" for k in range(4)]
                return x, cv
            x, cv = ex(0)
            blk += [x[0], x[1], cv[0], x[2], cv[1], x[3], cv[2], cv[3]]
            TL.at(base + 15, blk, prio=70)
            for ks in range(1, 4):
                x, cv = ex(ks)
                g0 = base + 16 + 4 * (ks - 1)
                TL.at(g0, [x[0], x[1][0]], prio=50)
                TL.at(g0 + 1, [x[1][1], cv[0], x[2][0], cv[1]], prio=50)
                TL.at(g0 + 2, [x[2][1], x[3]], prio=50)
                TL.at(g0 + 3, [cv[2], cv[3]], prio=50)
            adds = []
            for k in range(32):
                l = VL0 if k % 2 == 0 else VL1
                if t == 0 and k < 2:
                    adds.append(f"v_mov_b32 v{l}, v{VS+k}")
                else:
                    adds.append(f"v_add_f32 v{l}, v{l}, v{VS+k}")
            addgap = [17, 17, 19, 19, 19, 19, 21, 21, 23, 23, 23, 23, 25, 25, 27, 27, 27, 27,
                      28, 28, 28, 28, 29, 29, 29, 29, 30, 30, 30, 30, 31, 31]
            for k in range(32):
                TL.at(base + addgap[k], adds[k], prio=52)
            if s + 2 < 16:
                pcs = self.dma_k(s + 2) + self.dma_v(s + 2)
                spread(pcs, [base + k for k in (-4, 0, 4, 8, 12, 15, 20, 24)])
            elif s == 14:
                spread(self.dma_wo(0) + self.dma_wo(1), [base + k for k in (-4, 0, 4, 8, 12, 15, 20, 24)])
            else:
                spread(self.dma_wo(2) + self.dma_wo(3) + self.dma_wo(4),
                       [base + k for k in (-4, -2, 0, 2, 4, 6, 8, 10, 12, 14, 15, 15)])
            if s == 1:
                TL.at(base + 31, [self.qcvt(VACC, AQ[1]), self.wo_offsets()], prio=80)
            if s == 4:
                TL.at(bg, [f"s_lshl_b32 s{sT3}, s{sB}, 2", self.poll_issue(SDBG, VZ, sT3)], prio=91)
            if s == 6:
                TL.at(bg, self.poll_check(SDBG, VZ, sT3, 16), prio=91)
            if s == 7:
                x = self.normalize(VS)
                x += self.frag_ops("buffer_store_dwordx4", lambda f: v(VS + 4 * f, 4), sOOWN, 0, "O1")
                x += [f"v_accvgpr_write_b32 a{AB+k}, v{VS+k}" for k in range(32)]
                TL.at(base + 31, [x, self.stamp("U1end")], prio=80)
            if s == 10:
                TL.at(bg, [W("O1"), self.flag_store(sFO, sI, 1)], prio=91)
            if s == 12:
                TL.at(bg, self.poll_issue(SWS, VFL, sFO), prio=91)
            if s == 14:
                TL.at(bg, self.poll_check(SWS, VFL, sFO, 1), prio=91)
            if s == 15:
                x = [self.stamp("Aend")]
                x += self.normalize(VS)
                x += self.frag_ops("buffer_store_dwordx4", lambda f: v(VS + 4 * f, 4), sOOWN, 256 * 4 * 7168, "O2")
                for j in range(3):
                    x += self.frag_ops("buffer_load_dwordx4", lambda f: a(AB + 32 * (j + 1) + 4 * f, 4), sOP + j, 0, f"B{j}")
                TL.at(base + 31, x, prio=80)

        DREG = [AQ[0], AQ[1], AB]
        for n in range(16):
            base = 768 + 16 * n
            bg = base - 5
            j, u = self.t_info(n)
            TL.at(bg, [W(f"T{n}", lgkm0=(n == 0)), "s_barrier"], prio=90)
            for m in range(16):
                ks, nb = m >> 2, m & 3
                item = base + m
                fo = 16 * (n & 1) + 4 * ks
                if j == 0:
                    bop = a(AB + fo, 4) if u == 0 else v(VS + fo, 4)
                else:
                    bop = a(AB + 32 * j + fo, 4) if u == 0 else a(DREG[j - 1] + fo, 4)
                d = v(VACC + 16 * nb, 16)
                c = "0" if (n == 0 and ks == 0) else d
                TL.mfma(f"{MF} {d}, {a(fq(item),4)}, {bop}, {c}")
                TL.at(item - LA, self.tr_reads(item, TSLOT[n], ks, nb), prio=40)
            sched = {0: [5, 6], 1: [7, 8], 2: [9, 10], 3: [11], 4: [12], 5: [13], 6: [14], 7: [15]}
            pcs = []
            for tn in sched.get(n, []):
                pcs += self.dma_wo(tn)
            spread(pcs, [base + k for k in range(len(pcs))])
            if n == 4:
                TL.at(bg, [W("O2"), self.flag_store(sFO, sI, 2), self.stamp("O2ack")], prio=91)
            if n == 8:
                TL.at(bg, self.poll_issue(SWS, VFL, sFO), prio=91)
            if n == 9:
                x = self.poll_check(SWS, VFL, sFO, 2)
                x += self.stamp("O2seen")
                for jj in range(3):
                    x += self.frag_ops("buffer_load_dwordx4", lambda f: a(DREG[jj] + 4 * f, 4), sOP + jj, 256 * 4 * 7168, f"D{jj}")
                TL.at(bg, x, prio=91)
        TL.flush(P)

        P.add(self.stamp("Tend"))
        if self.p32:
            for be in range(3):
                P.add(self.frag_ops("buffer_store_dwordx4", lambda f: v(VACC + 16 * be + 4 * f, 4), sPS + be, 0, "PS", nfr=4))
        else:
            for be in range(3):
                for k in range(8):
                    P.e(f"v_cvt_pk_bf16_f32 v{VO+8*be+k}, v{VACC+16*be+2*k}, v{VACC+16*be+2*k+1}")
                P.add(self.frag_ops("buffer_store_dwordx4", lambda f: v(VO + 8 * be + 4 * f, 4), sPS + be, 0, "PS", nfr=2))
        P.add([W("PS"), self.flag_store(sFP, sG, 1)])
        P.add(self.stamp("Pack"))
        P.add(self.poll_issue(SWS, VFL, sFP))
        P.add(self.poll_check(SWS, VFL, sFP, 1))
        P.add(self.stamp("Pseen"))
        own = VACC + 48
        if self.p32:
            for be in range(3):
                P.add(self.frag_ops("buffer_load_dwordx4", lambda f: v(VO + 16 * be + 4 * f, 4), sPR + be, 0, "PR", nfr=4))
            for be in range(3):
                for k in range(8):
                    P.e(f"v_pk_add_f32 {v(own+2*k,2)}, {v(own+2*k,2)}, {v(VO+16*be+2*k,2)}")
        else:
            for be in range(3):
                P.add(self.frag_ops("buffer_load_dwordx4", lambda f: v(VS + 8 * be + 4 * f, 4), sPR + be, 0, "PR", nfr=2))
            for be in range(3):
                for k in range(8):
                    r = VS + 8 * be + k
                    t = VT + 2 * (k & 1)
                    P.e(f"v_lshlrev_b32 v{t}, 16, v{r}\nv_and_b32 v{t+1}, 0xffff0000, v{r}")
                    P.e(f"v_pk_add_f32 {v(own+2*k,2)}, {v(own+2*k,2)}, {v(t,2)}")
        for k in range(8):
            P.e(f"v_cvt_pk_bf16_f32 v{VP+k}, v{own+2*k}, v{own+2*k+1}")
        for uu in range(2):
            P.e(f"buffer_store_dwordx4 {v(VP+4*uu,4)}, v{VOUT}, {srd(SOUT)}, s{sOUTO} offen offset:{32*uu}")
        if self.stamps:
            P.add(W(vm0=True))
            P.add(self.stamp("end"))
            P.e(f"s_lshl_b32 s{sT0}, s2, 2\ns_add_u32 s{sT0}, s{sT0}, s{sW}\ns_lshl_b32 s{sT0}, s{sT0}, 6\ns_add_u32 s{sT0}, s{sT0}, {WS_STAMP}")
            for k in range(16):
                P.e(f"v_mov_b32 v{VO+k}, s{sSTAMP+k}")
            P.e("s_mov_b64 exec, 1")
            for k in range(4):
                P.e(f"buffer_store_dwordx4 {v(VO+4*k,4)}, v{VZ}, {srd(SWS)}, s{sT0} offen offset:{16*k}")
        P.e("L_end:\ns_endpgm")
        rs = ["L_rescale:", "s_nop 15",
              f"v_mov_b32 v{VMX1}, v{VMX0}", "s_nop 1", f"v_permlane32_swap_b32 v{VMX0}, v{VMX1}", "s_nop 1",
              f"v_max3_f32 v{VMX0}, v{VMX0}, v{VMX1}, 0",
              f"v_exp_f32 v{VT}, -v{VMX0}"]
        for k in range(16):
            rs.append(f"v_sub_f32 v{VNEGM+k}, v{VNEGM+k}, v{VMX0}")
        for k in range(32):
            rs.append(f"v_sub_f32 v{VS+k}, v{VS+k}, v{VMX0}")
        for k in range(64):
            rs.append(f"v_mul_f32 v{VO+k}, v{VO+k}, v{VT}")
        rs += [f"v_mul_f32 v{VL0}, v{VL0}, v{VT}", f"v_mul_f32 v{VL1}, v{VL1}, v{VT}", "s_nop 3",
               f"s_setpc_b64 s[{sRET}:{sRET+1}]", "L_codeend:"]
        P.add(aside("\n".join(rs)))
        body = P.finalize()
        self.stats = P.stats
        txt = HEADER + '.amdgcn_target "amdgcn-amd-amdhsa--gfx950"\n.text\n' + f".globl {NAME}\n.p2align 8\n.type {NAME},@function\n"
        txt += body
        txt += f""".section .rodata,"a"
.p2align 6
.amdhsa_kernel {NAME}
  .amdhsa_next_free_vgpr 512
  .amdhsa_next_free_sgpr 102
  .amdhsa_accum_offset 256
  .amdhsa_group_segment_fixed_size 0
  .amdhsa_kernarg_size 64
  .amdhsa_user_sgpr_count 2
  .amdhsa_user_sgpr_kernarg_segment_ptr 1
  .amdhsa_system_sgpr_workgroup_id_x 1
  .amdhsa_float_denorm_mode_32 3
.end_amdhsa_kernel
"""
        return txt


if __name__ == "__main__":
    out = sys.argv[1] if len(sys.argv) > 1 else "standalone__mha_block_cached__near_ridge.s"
    kw = {}
    for x in sys.argv[2:]:
        k, val = x.split("=", 1)
        kw[k] = eval(val)
    g = Gen(**kw)
    open(out, "w").write(g.build())
    print("stats", g.stats, "stamps", g.stampnames)
```

```python
import re

TRANS = ("v_exp_f32", "v_log_f32", "v_rcp_f32", "v_rsq_f32", "v_sqrt_f32", "v_sin_f32", "v_cos_f32")
_reg_re = re.compile(r"^-?(?:abs\()?([vas])(\d+)\)?$")
_rng_re = re.compile(r"^-?([vas])\[(\d+):(\d+)\]$")


def regs_of(op):
    op = op.strip()
    m = _reg_re.match(op)
    if m:
        return [m.group(1) + m.group(2)]
    m = _rng_re.match(op)
    if m:
        return [m.group(1) + str(i) for i in range(int(m.group(2)), int(m.group(3)) + 1)]
    if op in ("vcc", "m0", "exec"):
        return [op]
    return []


class Ins:
    def __init__(self, text, tag=None, aside=False, waittags=None, lgkm0=False, vm0=False):
        self.text = text
        self.tag = tag
        self.aside = aside
        self.waittags = waittags
        self.lgkm0 = lgkm0
        self.vm0 = vm0
        self.kind = None
        self.rd, self.wr, self.srcc, self.ab = set(), set(), set(), set()
        self.states = 1
        self.widestore = set()
        if text is not None and not aside:
            self.parse()

    def parse(self):
        t = self.text.split(";")[0].strip()
        if not t or t.endswith(":") or t.startswith("."):
            self.kind = "label"
            self.states = 0
            return
        sp = t.split(None, 1)
        op = sp[0]
        self.op = op
        rest = sp[1] if len(sp) > 1 else ""
        ops = [o.strip() for o in rest.split(",")]
        if ops:
            last = ops[-1].split()
            mods = last[1:]
            ops[-1] = last[0] if last else ""
        else:
            mods = []
        cut = []
        for o in [x.strip() for x in rest.split(",")]:
            w = o.split()
            if not w:
                continue
            cut.append(w[0])
            if len(w) > 1:
                break
        ops = cut
        R = [regs_of(o) for o in ops]
        allr = lambda l: set(r for x in l for r in x)
        words = rest.replace(",", " ").split()
        if op.startswith("v_mfma"):
            self.kind = "mfma"
            self.wr = set(R[0]); self.ab = allr(R[1:3]); self.srcc = set(R[3]); self.rd = self.ab | self.srcc
        elif op.startswith("ds_read"):
            self.kind = "ds"; self.wr = set(R[0]); self.rd = allr(R[1:])
        elif op.startswith("ds_"):
            self.kind = "ds"; self.rd = allr(R)
        elif op.startswith("buffer_load") or op.startswith("global_load"):
            self.kind = "vmem"
            if "lds" in words:
                self.rd = allr(R) | {"m0"}; self.dma = True
            else:
                self.wr = set(R[0]); self.rd = allr(R[1:])
        elif op.startswith("buffer_store") or op.startswith("buffer_atomic"):
            self.kind = "vmem"; self.rd = allr(R)
            if op.endswith("x4") or op.endswith("x3"):
                self.widestore = set(R[0])
        elif op.startswith("v_permlane"):
            self.kind = "valu"; self.rd = allr(R); self.wr = allr(R); self.permlane = True
        elif op.startswith("v_"):
            self.kind = "valu"
            self.wr = set(R[0]); self.rd = allr(R[1:])
            if op.startswith("v_fmac"):
                self.rd |= self.wr
            if any(op.startswith(x) for x in TRANS):
                self.trans = True
        elif op == "s_nop":
            self.kind = "nop"; self.states = int(ops[0]) + 1
        elif op in ("s_waitcnt", "s_barrier", "s_endpgm", "s_setprio") or op.startswith("s_cbranch") or op == "s_branch":
            self.kind = "sctl"
            if "vcc" in op:
                self.rd = {"vcc"}
        elif op.startswith("s_cmp") or op.startswith("s_setpc") or op.startswith("s_bitcmp"):
            self.kind = "salu"; self.rd = allr(R)
        elif op.startswith("s_load") or op.startswith("s_memrealtime") or op.startswith("s_memtime"):
            self.kind = "smem"; self.wr = set(R[0]); self.rd = allr(R[1:])
        elif op.startswith("s_"):
            self.kind = "salu"; self.wr = set(R[0]); self.rd = allr(R[1:])
        else:
            raise ValueError("unknown instruction " + t)

    def is_(self, name):
        return getattr(self, name, False)


def isv(r):
    return r[0] in "va" and r != "vcc"


def need_states(p, c):
    n = 0
    if p.kind == "valu":
        wv = set(r for r in p.wr if isv(r))
        ws = p.wr - wv
        if c.kind == "mfma" and wv & c.rd:
            n = max(n, 2)
        if c.kind == "valu":
            if p.is_("trans") and not c.is_("trans") and wv & c.rd:
                n = max(n, 1)
            if c.is_("permlane") and wv & c.rd:
                n = max(n, 2)
            if (c.op.startswith("v_readfirstlane") or c.op.startswith("v_readlane")) and wv & c.rd:
                n = max(n, 1)
            if ws & c.rd:
                n = max(n, 2)
        if c.kind == "vmem" and ws & c.rd:
            n = max(n, 5)
        if c.kind in ("salu", "sctl") and ws & c.rd:
            n = max(n, 1)
    elif p.kind == "mfma":
        if c.kind in ("valu", "ds", "vmem") and p.wr & (c.rd | c.wr):
            n = max(n, 12)
        if c.kind == "mfma":
            if p.wr & c.ab:
                n = max(n, 12)
            if p.wr & c.srcc and p.wr != c.srcc:
                n = max(n, 10)
            if p.wr & c.wr and p.wr != c.srcc:
                n = max(n, 10)
        if c.kind == "valu" and p.srcc & c.wr:
            n = max(n, 7)
    elif p.kind == "salu":
        if "m0" in p.wr and c.is_("dma"):
            n = max(n, 1)
    elif p.kind == "vmem":
        if p.widestore & c.wr:
            n = max(n, 2)
    return n


class Prog:
    def __init__(self):
        self.ins = []

    def e(self, text, tag=None):
        for line in text.strip().split("\n"):
            line = line.strip()
            if line:
                self.ins.append(Ins(line, tag=tag))

    def add(self, x):
        if isinstance(x, str):
            self.e(x)
        elif isinstance(x, Ins):
            self.ins.append(x)
        else:
            for y in x:
                self.add(y)

    def finalize(self, eager=0):
        out = []
        ds = []
        dsage = []
        nm = [0]
        vm = []
        stats = dict(nops=0, lgkm=0, vmw=0, maxvm=0)

        def emit(i):
            need = 0
            dist = 0
            for p in reversed(out):
                if p.aside:
                    continue
                if dist >= 12:
                    break
                need = max(need, need_states(p, i) - dist)
                dist += p.states
            if need > 0:
                out.append(Ins(f"s_nop {need-1}"))
                stats["nops"] += need
            out.append(i)

        def wait(nvm=None, nds=None):
            parts = []
            if nvm is not None:
                assert nvm <= 63
                parts.append(f"vmcnt({nvm})")
                del vm[:len(vm) - nvm]
                stats["vmw"] += 1
            if nds is not None:
                assert nds <= 15
                parts.append(f"lgkmcnt({nds})")
                del ds[:len(ds) - nds]
                stats["lgkm"] += 1
            if parts:
                out.append(Ins("s_waitcnt " + " ".join(parts)))

        for i in self.ins:
            if i.aside:
                out.append(i)
                continue
            nvm = nds = None
            if i.text is None:
                if i.waittags is not None:
                    idx = [k for k, (t, _) in enumerate(vm) if t in i.waittags]
                    if idx:
                        nvm = len(vm) - 1 - max(idx)
                if i.vm0 and vm:
                    nvm = 0
                if i.lgkm0 and ds:
                    nds = 0
                wait(nvm, nds)
                continue
            touched = i.rd | i.wr
            idx = [k for k, d in enumerate(ds) if d & touched]
            if idx:
                last = max(idx)
                if eager:
                    ages = dsage[len(dsage) - len(ds):]
                    while last + 1 < len(ds) and nm[0] - ages[last + 1] >= eager:
                        last += 1
                nds = len(ds) - 1 - last
            idx = [k for k, (_, d) in enumerate(vm) if d & touched]
            if idx:
                nvm = len(vm) - 1 - max(idx)
            if i.kind == "ds" and (len(ds) if nds is None else nds) >= 15:
                nds = 14
                if eager:
                    ages = dsage[len(dsage) - len(ds):]
                    while nds > 0 and nm[0] - ages[len(ds) - nds] >= eager:
                        nds -= 1
            if i.kind == "vmem" and (len(vm) if nvm is None else nvm) >= 63:
                nvm = 62
            wait(nvm, nds)
            if i.kind == "sctl" and i.op == "s_waitcnt":
                m = re.search(r"vmcnt\((\d+)\)", i.text)
                if m:
                    n = int(m.group(1)); del vm[:max(0, len(vm) - n)]
                m = re.search(r"lgkmcnt\((\d+)\)", i.text)
                if m:
                    n = int(m.group(1)); del ds[:max(0, len(ds) - n)]
            emit(i)
            if i.kind == "mfma":
                nm[0] += 1
            if i.kind == "ds":
                ds.append(set(i.wr)); dsage.append(nm[0])
            elif i.kind == "vmem":
                vm.append((i.tag, set(i.wr)))
                stats["maxvm"] = max(stats["maxvm"], len(vm))
        self.out = out
        self.stats = stats
        return "\n".join(("" if x.kind == "label" or (x.aside and x.text.rstrip().endswith(":")) else "  ") + x.text for x in out) + "\n"


def W(*tags, lgkm0=False, vm0=False):
    return Ins(None, waittags=set(tags), lgkm0=lgkm0, vm0=vm0)


def aside(text):
    return [Ins(l.strip(), aside=True) for l in text.strip().split("\n") if l.strip()]


def T(text, tag):
    return [Ins(l.strip(), tag=tag) for l in text.strip().split("\n") if l.strip()]


class Timeline:
    def __init__(self):
        self.m = []
        self.fill = {}
        self.seq = 0

    def mfma(self, text):
        self.m.append(text)
        return len(self.m) - 1

    def at(self, gap, x, prio=50):
        gap = max(gap, -1)
        self.seq += 1
        self.fill.setdefault(gap, []).append((prio, self.seq, x))

    def flush(self, prog):
        for k in range(-1, len(self.m)):
            if k >= 0:
                prog.add(self.m[k])
            for _, _, x in sorted(self.fill.get(k, []), key=lambda z: (z[0], z[1])):
                prog.add(x)
        assert all(k < len(self.m) for k in self.fill)
```

```python
import sys, struct, math
from asmlib import Prog, Timeline, W, aside, T, Ins

NAME = "standalone__mha_block_cached__near_ridge_kernel"

HEADER = """; Kernarg layout for this problem (64 bytes, ptrs only, base s[0:1]):
; @launch grid=(256,1,1) block=(256,1,1) lds=163840
"""


def f2u(x):
    return struct.unpack("<I", struct.pack("<f", x))[0]


VO = 0
VACC = 64
VS = 128
VNEGM = 160
VP = 176
VKRD = 192
VTR = 200
VKD = 212
VVD = 216
VWD = 217
VXD = 221
VXR = 225
VFR = 229
VOUT = 230
VFL = 231
VL0, VL1, VMX0, VMX1 = 232, 233, 234, 235
VT = 236
VPOLL = 248
VZ = 249
VDUM = 250
AQ = 0
ASP = 32
AF = 64
NF = 16
AB = 128

SX, SK, SV, SWQ, SWO, SOUT, SDBG, SWS = 8, 12, 16, 20, 24, 28, 32, 36
sW, sB, sG, sI, sROT, sLW, sKV, sXB, sWQB = 40, 41, 42, 43, 44, 45, 46, 47, 48
sT0, sT1, sT2, sT3 = 49, 50, 51, 52
sSOX, sSOW, sSOK = 53, 54, 55
sHB = 56
sRET = 60
sSPIN, sTHR, sC = 62, 63, 64
sFO, sFP, sOOWN = 66, 67, 68
sOP = 69
sPS = 72
sPR = 75
sOUTO = 78
sKROT = 79
sSTAMP = 80
sTM = 96

OOB = 0x7F000000
WS_FO, WS_FP, WS_O = 0, 32768, 65536
WS_P = WS_O + 2 * 256 * 4 * 7168
WS_STAMP = 0x2000000
WS_SIZE = 0x2100000

KSLOT, VSLOT, PRING, XSLOT, WSLOT = [4, 5, 6], [0, 1, 2], [1, 2, 6, 7], [8, 9], [3, 7]


def srd(n):
    return f"s[{n}:{n+3}]"


def v(n, k=1):
    return f"v{n}" if k == 1 else f"v[{n}:{n+k-1}]"


def a(n, k=1):
    return f"a{n}" if k == 1 else f"a[{n}:{n+k-1}]"


def fq(item):
    return AF + 4 * (item % NF)


class Gen:
    def __init__(self, stamps=False, p32=False, kvflag=" nt", wflag="", xflag="", thr=8.0, **opt):
        self.stamps = stamps
        self.p32 = p32
        self.kvflag, self.wflag, self.xflag = kvflag, wflag, xflag
        self.thr = thr
        self.opt = opt
        self.nlab = 0
        self.nstamp = 0
        self.stampnames = []

    def lab(self, s):
        self.nlab += 1
        return f"L_{s}_{self.nlab}"

    def stamp(self, name):
        if not self.stamps:
            return []
        sel = self.opt.get("sel", ("P0", "Pend", "U1end", "Aend", "O2ack", "O2seen", "Tend", "Pack", "Pseen", "end"))
        if name not in sel:
            return []
        if self.opt.get("cyc"):
            k = self.nstamp; self.nstamp += 1; self.stampnames.append(name)
            return [W(lgkm0=True), Ins(f"s_memtime s[{sTM}:{sTM+1}]"), Ins("s_waitcnt lgkmcnt(0)"), Ins(f"s_mov_b32 s{sSTAMP+k}, s{sTM}")]
        k = self.nstamp
        self.nstamp += 1
        self.stampnames.append(name)
        assert k < 16
        return [W(lgkm0=True), Ins(f"s_memrealtime s[{sTM}:{sTM+1}]"), Ins("s_waitcnt lgkmcnt(0)"),
                Ins(f"s_mov_b32 s{sSTAMP+k}, s{sTM}")]

    def dma_tile(self, slot, voffs, srdn, soff, flag, tag, pre=""):
        pieces = []
        for jj in range(4):
            x = []
            if jj == 0:
                if pre:
                    x += [Ins(l) for l in pre.strip().split("\n")]
                x.append(Ins(f"s_add_u32 m0, s{sLW}, {slot*16384}"))
            vo = voffs[jj] if isinstance(voffs, list) else voffs
            x.append(Ins(f"buffer_load_dwordx4 v{vo}, {srd(srdn)}, s{soff} offen offset:{jj*1024}{flag} lds", tag=tag))
            pieces.append(x)
        return pieces

    def dma_x(self, p):
        pre = f"s_add_u32 s{sT0}, s{sROT}, {p}\ns_and_b32 s{sT0}, s{sT0}, 7\ns_lshl_b32 s{sT0}, s{sT0}, 7\ns_add_u32 s{sSOX}, s{sT0}, s{sXB}"
        return self.dma_tile(XSLOT[p & 1], [VXD + j for j in range(4)], SX, sSOX, self.xflag, f"X{p}", pre)

    def dma_wq(self, p, sel, slot):
        pre = f"s_add_u32 s{sT0}, s{sROT}, {p}\ns_and_b32 s{sT0}, s{sT0}, 7\ns_lshl_b32 s{sT0}, s{sT0}, 19\ns_add_u32 s{sSOW}, s{sT0}, s{sWQB}"
        if sel:
            pre += f"\ns_add_u32 s{sSOW}, s{sSOW}, 256"
        return self.dma_tile(slot, [VWD + j for j in range(4)], SWQ, sSOW, self.wflag, f"Q{sel}{p}", pre)

    def kv_pre(self, s):
        if not self.opt.get("kvrot"):
            return f"s_add_u32 s{sSOK}, s{sKV}, {s*16384}"
        return (f"s_add_u32 s{sSOK}, s{sKROT}, {(s & 7)*16384}\ns_and_b32 s{sSOK}, s{sSOK}, 0x1ffff\n"
                f"s_add_u32 s{sSOK}, s{sSOK}, s{sKV}" + (f"\ns_add_u32 s{sSOK}, s{sSOK}, 0x20000" if s >= 8 else ""))

    def dma_k(self, s):
        pre = self.kv_pre(s)
        return self.dma_tile(KSLOT[s % 3], [VKD + j for j in range(4)], SK, sSOK, self.kvflag, f"K{s}", pre)

    def dma_v(self, s):
        pre = self.kv_pre(s)
        return self.dma_tile(VSLOT[s % 3], VVD, SV, sSOK, self.kvflag, f"V{s}", pre)

    def t_info(self, n):
        return (n % 8) // 2, n // 8

    def dma_wo(self, n, slot):
        j, u = self.t_info(n)
        pre = f"s_add_u32 s{sSOW}, s{sHB+j}, {u*131072 + (n & 1)*65536}"
        return self.dma_tile(slot, [VWD + jj for jj in range(4)], SWO, sSOW, self.wflag, f"T{n}", pre)

    def tr_reads(self, item, slot, ks, db):
        r = fq(item)
        adr = VTR + 4 * (slot >> 2) + db
        off = (slot & 3) * 16384 + ks * 4096
        return [f"ds_read_b64_tr_b16 {a(r,2)}, v{adr} offset:{off}",
                f"ds_read_b64_tr_b16 {a(r+2,2)}, v{adr} offset:{off+1024}"]

    def poll_issue(self, srdn, voff, soff):
        return Ins(f"buffer_load_dword v{VPOLL}, v{voff}, {srd(srdn)}, s{soff} offen sc1", tag="poll")

    def poll_check(self, srdn, voff, soff, need):
        ok, sp = self.lab("ok"), self.lab("spin")
        x = [Ins(f"v_cmp_gt_u32 vcc, {need}, v{VPOLL}"), Ins(f"s_cbranch_vccz {ok}")]
        x += aside(f"""
            s_mov_b32 s{sSPIN}, 0x40000
            {sp}:
            buffer_load_dword v{VPOLL}, v{voff}, {srd(srdn)}, s{soff} offen sc1
            s_waitcnt vmcnt(0)
            v_cmp_gt_u32 vcc, {need}, v{VPOLL}
            s_sub_u32 s{sSPIN}, s{sSPIN}, 1
            s_cmp_eq_u32 s{sSPIN}, 0
            s_cbranch_scc1 {ok}
            s_cbranch_vccnz {sp}
            """)
        x.append(Ins(f"{ok}:"))
        return x

    def flag_store(self, soff, sidx, val):
        return [Ins(f"v_mov_b32 v{VT+10}, {val}"), Ins(f"s_lshl_b32 s{sT1}, s{sidx}, 2"), Ins(f"s_add_u32 s{sT1}, s{sT1}, s{soff}"),
                Ins("s_mov_b64 exec, 1"),
                Ins(f"buffer_store_dword v{VT+10}, v{VZ}, {srd(SWS)}, s{sT1} offen sc1", tag="flag"),
                Ins("s_mov_b64 exec, -1")]

    def frag_ops(self, op, regs, soff, extra, tag, nfr=8):
        x = []
        for f in range(nfr):
            y = []
            if f % 4 == 0:
                y.append(Ins(f"s_add_u32 s{sT2}, s{soff}, {extra + f*896}"))
            y.append(Ins(f"{op} {regs(f)}, v{VFR}, {srd(SWS)}, s{sT2} offen offset:{(f % 4)*896} sc1", tag=tag))
            x.append(y)
        return x

    def p_send(self, be):
        if self.p32:
            return self.frag_ops("buffer_store_dwordx4", lambda f: v(VACC + 16 * be + 4 * f, 4), sPS + be, 0, "PS", nfr=4)
        st = self.frag_ops("buffer_store_dwordx4", lambda f: v(VO + 8 * be + 4 * f, 4), sPS + be, 0, "PS", nfr=2)
        cv = [f"v_cvt_pk_bf16_f32 v{VO+8*be+k}, v{VACC+16*be+2*k}, v{VACC+16*be+2*k+1}" for k in range(8)]
        return [cv[0:2], cv[2:4], [st[0]] + cv[4:6], cv[6:8], st[1]]

    def qcvt(self, acc, dst):
        x = []
        for k in range(32):
            r = acc + 2 * k
            t = VT + 4 + (k & 3)
            x.append([f"v_pk_mul_f32 {v(r,2)}, {v(r,2)}, s[{sC}:{sC+1}]",
                      f"v_cvt_pk_bf16_f32 v{t}, v{r}, v{r+1}",
                      f"v_accvgpr_write_b32 a{dst+k}, v{t}"])
        return x

    def norm_head(self):
        return [f"v_add_f32 v{VT}, v{VL0}, v{VL1}",
                f"v_mov_b32 v{VT+1}, v{VT}",
                f"v_permlane32_swap_b32 v{VT}, v{VT+1}",
                f"v_add_f32 v{VT}, v{VT}, v{VT+1}",
                f"v_rcp_f32 v{VT}, v{VT}"]

    def norm_pair(self, k, dstv=None, dsta=None):
        r = VO + 2 * k
        x = [f"v_pk_mul_f32 {v(r,2)}, {v(r,2)}, {v(VT,2)} op_sel_hi:[1,0]"]
        if dstv is not None:
            x.append(f"v_cvt_pk_bf16_f32 v{dstv+k}, v{r}, v{r+1}")
        else:
            t = VT + 4 + (k & 3)
            x += [f"v_cvt_pk_bf16_f32 v{t}, v{r}, v{r+1}", f"v_accvgpr_write_b32 a{dsta+k}, v{t}"]
        return x

    def setup(self, P):
        e = P.e
        e(f"s_cmp_ge_u32 s2, 256\ns_cbranch_scc1 L_end")
        e(f"s_load_dwordx16 s[{80}:{95}], s[0:1], 0")
        if self.stamps:
            e(f"s_memtime s[98:99]" if self.opt.get("cyc") else "s_memrealtime s[98:99]")
        e(f"""
            v_lshrrev_b32 v1, 6, v0
            v_and_b32 v2, 63, v0
            v_readfirstlane_b32 s{sW}, v1
            s_and_b32 s{sG}, s2, 3
            s_lshr_b32 s{sT0}, s2, 3
            s_and_b32 s{sI}, s{sT0}, 3
            s_lshr_b32 s{sT1}, s{sT0}, 2
            s_lshl_b32 s{sB}, s2, 1
            s_and_b32 s{sB}, s{sB}, 8
            s_add_u32 s{sB}, s{sB}, s{sT1}
            s_lshl_b32 s{sROT}, s{sI}, 1
            s_add_u32 s{sROT}, s{sROT}, s{sT1}
            s_and_b32 s{sROT}, s{sROT}, 7
            s_lshl_b32 s{sLW}, s{sW}, 12
            s_lshl_b32 s{sT2}, s{sG}, 2
            s_add_u32 s{sT2}, s{sT2}, s{sI}
            s_lshl_b32 s{sWQB}, s{sT2}, 9
            s_lshl_b32 s{sT3}, s{sB}, 4
            s_add_u32 s{sT3}, s{sT3}, s{sT2}
            s_lshl_b32 s{sKV}, s{sT3}, 18
            s_mul_i32 s{sXB}, s{sB}, 114688
        """)
        e(f"""
            v_lshrrev_b32 v3, 4, v2
            v_and_b32 v4, 15, v2
            v_lshlrev_b32 v5, 2, v3
            v_xor_b32 v5, v5, v4
            v_lshl_add_u32 v6, v1, 4, v3
        """)
        e(f"""
            v_lshrrev_b32 v7, 3, v2
            v_mad_u32_u24 v7, v1, 28, v7
            v_lshlrev_b32 v7, 10, v7
            v_and_b32 v8, 7, v2
            v_xor_b32 v8, v8, v3
            v_lshl_add_u32 v{VXD}, v8, 4, v7
            v_xor_b32 v8, 4, v8
            v_lshl_add_u32 v9, v8, 4, v7
            v_add_u32 v{VXD+1}, {7*1024}, v9
            v_add_u32 v{VXD+2}, {14*1024}, v{VXD}
            v_add_u32 v9, {21*1024}, v9
            v_mov_b32 v10, {OOB}
            v_cmp_gt_u32 vcc, 32, v2
            v_cndmask_b32 v{VXD+3}, v10, v9, vcc
        """)
        e(f"""
            v_lshlrev_b32 v7, 13, v6
            v_lshl_add_u32 v{VWD}, v5, 4, v7
            v_add_u32 v{VWD+1}, {32768-1024}, v{VWD}
            v_add_u32 v{VWD+2}, {2*(32768-1024)}, v{VWD}
            v_add_u32 v{VWD+3}, {3*(32768-1024)}, v{VWD}
        """)
        e(f"""
            s_getpc_b64 s[{sTM}:{sTM+1}]
            L_pc0:
            s_sub_u32 s{sTM}, s{sTM}, L_pc0-{NAME}
            s_subb_u32 s{sTM+1}, s{sTM+1}, 0
            s_lshl_b32 s{sT1}, s{sT0}, 11
            v_and_b32 v7, 3, v2
            v_lshl_add_u32 v7, v1, 2, v7
            v_lshl_add_u32 v7, v7, 7, s{sT1}
            v_min_u32 v7, L_codeend-{NAME}-4, v7
        """)
        e("s_waitcnt lgkmcnt(0)")
        sizes = [(SX, 1835008), (SK, 67108864), (SV, 67108864), (SWQ, 4194304), (SWO, 4194304), (SOUT, 1835008), (SDBG, 256), (SWS, WS_SIZE)]
        def mksrd(k):
            n, sz = sizes[k]
            e(f"s_mov_b64 s[{n}:{n+1}], s[{80+2*k}:{81+2*k}]\ns_mov_b32 s{n+2}, {sz}\ns_mov_b32 s{n+3}, 0x20000")
        mksrd(0); mksrd(3)
        P.add(self.dma_x(0)); P.add(self.dma_wq(0, 0, PRING[0]))
        e(f"global_load_dword v{VDUM}, v7, s[{sTM}:{sTM+1}]", tag="pf")
        P.add(self.dma_x(1)); P.add(self.dma_wq(1, 0, PRING[1]))
        for k in (1, 2, 4, 5, 6, 7):
            mksrd(k)
        if self.stamps:
            e(f"s_mov_b32 s{sSTAMP}, s98")
            self.nstamp = 1; self.stampnames.append("start")
        e(f"""
            v_and_b32 v11, 31, v2
            v_lshrrev_b32 v12, 5, v2
            v_mov_b32 v{VZ}, 0
        """)
        e(f"""
            s_lshl_b32 s{sT0}, s{sB}, 2
            s_add_u32 s{sT1}, s{sT0}, s{sG}
            s_lshl_b32 s{sT1}, s{sT1}, 2
            s_add_u32 s{sT1}, s{sT1}, s{sW}
            s_lshl_b32 s{sFO}, s{sT1}, 7
            s_add_u32 s{sT1}, s{sT0}, s{sI}
            s_lshl_b32 s{sT1}, s{sT1}, 2
            s_add_u32 s{sT1}, s{sT1}, s{sW}
            s_lshl_b32 s{sT1}, s{sT1}, 7
            s_add_u32 s{sFP}, s{sT1}, {WS_FP}
            s_lshl_b32 s{sT0}, s{sI}, 2
            s_add_u32 s{sT0}, s{sT0}, s{sFO}
            s_lshl_b32 s{sT1}, s{sG}, 2
            s_add_u32 s{sT1}, s{sT1}, s{sFP}
            v_mov_b32 v7, s{sT0}
            v_mov_b32 v8, s{sT1}
            v_cmp_eq_u32 vcc, 0, v2
            v_cndmask_b32 v7, v8, v7, vcc
            s_mov_b64 exec, 3
        """)
        e(f"buffer_store_dword v{VZ}, v7, {srd(SWS)}, 0 offen sc1", tag="clr")
        e("s_mov_b64 exec, -1")
        e(f"""
            v_lshrrev_b32 v7, 1, v11
            v_and_b32 v7, 7, v7
            v_xor_b32 v7, v7, v12
            v_lshlrev_b32 v8, 7, v11
            v_lshl_add_u32 v8, v1, 12, v8
            v_add_u32 v8, {XSLOT[0]*16384}, v8
        """)
        for ks in range(4):
            e(f"v_xor_b32 v9, {2*ks}, v7\nv_lshl_add_u32 v{VXR+ks}, v9, 4, v8")
        e(f"""
            v_bfe_u32 v7, v2, 2, 2
            v_lshl_add_u32 v8, v12, 3, v7
            v_lshlrev_b32 v8, 8, v8
            v_bfe_u32 v9, v2, 4, 1
            v_lshl_add_u32 v8, v9, 5, v8
            v_and_b32 v9, 1, v2
            v_lshl_add_u32 v8, v9, 4, v8
            v_bfe_u32 v9, v2, 1, 1
            v_lshl_add_u32 v8, v9, 3, v8
        """)
        for db in range(4):
            e(f"v_xor_b32 v9, {db}, v7\nv_lshl_add_u32 v{VTR+db}, v9, 6, v8")
            e(f"v_add_u32 v{VTR+4+db}, 0x10000, v{VTR+db}\nv_add_u32 v{VTR+8+db}, 0x20000, v{VTR+db}")
        e(f"v_lshlrev_b32 v7, 8, v6\nv_lshl_add_u32 v{VVD}, v5, 4, v7\nv_xor_b32 v8, v4, v3")
        for jj in range(4):
            e(f"v_xor_b32 v9, {4*jj}, v8\nv_lshl_add_u32 v{VKD+jj}, v9, 4, v7")
        e(f"""
            v_and_b32 v7, 0x13, v11
            v_bfe_u32 v8, v11, 2, 1
            v_lshl_add_u32 v7, v8, 3, v7
            v_bfe_u32 v8, v11, 3, 1
            v_lshl_add_u32 v7, v8, 2, v7
            v_and_b32 v8, 15, v7
            v_xor_b32 v8, v8, v12
            v_lshlrev_b32 v7, 8, v7
            v_add_u32 v7, {KSLOT[0]*16384}, v7
        """)
        for s in range(8):
            e(f"v_xor_b32 v9, {2*s}, v8\nv_lshl_add_u32 v{VKRD+s}, v9, 4, v7")
        e(f"""
            v_mad_u32_u24 v7, v12, 28, v11
            v_lshlrev_b32 v7, 4, v7
            v_mad_u32_u24 v8, v1, 28, v11
            v_lshlrev_b32 v8, 10, v8
            v_lshl_add_u32 v8, v12, 4, v8
            v_cmp_gt_u32 vcc, 28, v11
            v_cndmask_b32 v{VFR}, v10, v7, vcc
            v_cndmask_b32 v{VOUT}, v10, v8, vcc
            v_and_b32 v7, 3, v2
            v_lshlrev_b32 v{VFL}, 2, v7
        """)
        e(f"v_mov_b32 v{VT+8}, v6\nv_mov_b32 v{VT+9}, v5")
        kr = self.opt.get("kvrot")
        if kr == 1:
            e(f"s_lshl_b32 s{sKROT}, s{sROT}, 14")
        elif kr == 2:
            e(f"s_lshr_b32 s{sKROT}, s2, 3\ns_add_u32 s{sKROT}, s{sKROT}, s2\ns_and_b32 s{sKROT}, s{sKROT}, 7\ns_lshl_b32 s{sKROT}, s{sKROT}, 14")
        c = math.log2(math.e) / math.sqrt(128.0)
        e(f"s_mov_b32 s{sC}, {f2u(c)}\ns_mov_b32 s{sC+1}, {f2u(c)}\ns_mov_b32 s{sTHR}, {f2u(self.thr)}")
        PB = 3584 if self.p32 else 1792
        e(f"""
            s_lshl_b32 s{sT0}, s{sT3}, 2
            s_add_u32 s{sT0}, s{sT0}, s{sW}
            s_mul_i32 s{sT0}, s{sT0}, 7168
            s_add_u32 s{sOOWN}, s{sT0}, {WS_O}
            s_lshl_b32 s{sT0}, s{sG}, 6
            s_lshl_b32 s{sT1}, s{sI}, 8
            s_add_u32 s{sT0}, s{sT0}, s{sT1}
            s_add_u32 s{sOUTO}, s{sT0}, s{sXB}
        """)
        for j in range(4):
            e(f"""
                s_add_u32 s{sT0}, s{sI}, {j}
                s_and_b32 s{sT0}, s{sT0}, 3
                s_lshl_b32 s{sT1}, s{sG}, 2
                s_add_u32 s{sT1}, s{sT1}, s{sT0}
                s_lshl_b32 s{sT2}, s{sT1}, 18
                s_lshl_b32 s{sHB+j}, s{sI}, 8
                s_add_u32 s{sHB+j}, s{sHB+j}, s{sT2}
            """)
            if j:
                e(f"""
                    s_sub_i32 s{sT0}, s{sT0}, s{sI}
                    s_mul_i32 s{sT0}, s{sT0}, {4*7168}
                    s_add_i32 s{sOP+j-1}, s{sOOWN}, s{sT0}
                """)
        e(f"s_lshl_b32 s{sT3}, s{sB}, 2\ns_add_u32 s{sT3}, s{sT3}, s{sI}\ns_lshl_b32 s{sT3}, s{sT3}, 6\ns_add_u32 s{sT3}, s{sT3}, s{sW}")
        for be in range(3):
            e(f"""
                s_add_u32 s{sT0}, s{sG}, {be+1}
                s_and_b32 s{sT0}, s{sT0}, 3
                s_lshl_b32 s{sT1}, s{sT0}, 2
                s_add_u32 s{sT1}, s{sT1}, s{sG}
                s_lshl_b32 s{sT1}, s{sT1}, 2
                s_add_u32 s{sT1}, s{sT1}, s{sT3}
                s_mul_i32 s{sT1}, s{sT1}, {PB}
                s_add_u32 s{sPS+be}, s{sT1}, {WS_P}
                s_lshl_b32 s{sT1}, s{sG}, 2
                s_add_u32 s{sT1}, s{sT1}, s{sT0}
                s_lshl_b32 s{sT1}, s{sT1}, 2
                s_add_u32 s{sT1}, s{sT1}, s{sT3}
                s_mul_i32 s{sT1}, s{sT1}, {PB}
                s_add_u32 s{sPR+be}, s{sT1}, {WS_P}
            """)

    def wo_offsets(self):
        x = [f"s_add_u32 s{sT0}, s{sG}, 1", f"s_lshl_b32 s{sT0}, s{sT0}, 2",
             f"v_add_u32 v{VT+9}, s{sT0}, v{VT+9}", f"v_and_b32 v{VT+9}, 15, v{VT+9}",
             f"v_lshlrev_b32 v{VT+8}, 10, v{VT+8}",
             f"v_lshl_add_u32 v{VWD}, v{VT+9}, 4, v{VT+8}"]
        for jj in range(1, 4):
            x.append(f"v_add_u32 v{VWD+jj}, {jj*3072}, v{VWD}")
        return x

    def build(self):
        P = Prog()
        P.e(f"{NAME}:")
        self.setup(P)
        TL = Timeline()
        MF = "v_mfma_f32_32x32x16_bf16"
        LA = 4

        def spread(pieces, gaps, prio=60):
            assert len(pieces) == len(gaps), (len(pieces), len(gaps))
            for pc, g_ in zip(pieces, gaps):
                TL.at(g_, pc, prio)

        opt = self.opt
        U2OFF = 256 * 4 * 7168
        DREG = [ASP, AQ, AB]
        def bload(j):
            return self.frag_ops("buffer_load_dwordx4", lambda f: a(AB + 32 * (j + 1) + 4 * f, 4), sOP + j, 0, f"B{j}")
        def dload(j):
            return self.frag_ops("buffer_load_dwordx4", lambda f: a(DREG[j] + 4 * f, 4), sOP + j, U2OFF, f"D{j}")
        def even(pcs, g0, span, prio=60):
            spread(pcs, [g0 + (k * span) // max(len(pcs), 1) for k in range(len(pcs))], prio)
        def wo_bop(n, ks):
            j, u = self.t_info(n)
            fo = 16 * (n & 1) + 4 * ks
            if u == 0:
                return a(AB + 32 * j + fo, 4)
            return v(VS + fo, 4) if j == 0 else a(DREG[j - 1] + fo, 4)
        LT = opt.get("lt", 6)

        u2map = opt.get("u2", {9: 0, 10: 1, 13: 2, 14: 3, 15: 4})
        wsteps = [s for s in range(16) if s < 8 or s in u2map]
        wslot = {s: WSLOT[k % 2] for k, s in enumerate(wsteps)}
        def dma_w(s):
            return self.dma_wq(s, 1, wslot[s]) if s < 8 else self.dma_wo(u2map[s], wslot[s])
        ptail = opt.get("ptail", {6: "KV", 7: "Wk"})
        pmap = {"K": lambda: self.dma_k(0), "V": lambda: self.dma_v(0), "W": lambda: dma_w(0), "k": lambda: self.dma_k(1), "v": lambda: self.dma_v(1)}
        pdone = "".join(ptail.values())
        for n in range(8):
            base = 16 * n
            xf = AB + 16 * n
            bg = base - LA - 1
            tags = [f"Q0{n}", f"X{n}"] + (["clr"] if n == 2 else [])
            TL.at(bg, [W(*tags), "s_barrier"], prio=90)
            TL.at(bg, self.stamp(f"P{n}"), prio=91)
            if n == 2:
                sk = self.lab("noadd")
                TL.at(bg, [f"s_lshl_b32 s{sT1}, s{sB}, 4", f"s_mov_b32 s{sSPIN}, 1", f"s_cmp_lg_u32 s{sW}, 0", f"s_cbranch_scc1 {sk}",
                           aside(f"s_atomic_add s{sSPIN}, s[{SDBG}:{SDBG+1}], s{sT1}"), f"{sk}:"], prio=92)
            for m in range(16):
                ks, nb = m >> 2, m & 3
                item = base + m
                c = "0" if (n == 0 and ks == 0) else v(VO + 16 * nb, 16)
                TL.mfma(f"{MF} {v(VO+16*nb,16)}, {a(fq(item),4)}, {a(xf+4*ks,4)}, {c}")
                TL.at(item - LA, self.tr_reads(item, PRING[n % 4], ks, nb), prio=95 if item - LA <= -1 else 40)
            for ks in range(4):
                g_ = base - LA + ks
                TL.at(g_, f"ds_read_b128 {a(xf+4*ks,4)}, v{VXR+ks} offset:{(n & 1)*16384}", prio=94 if g_ <= -1 else 39)
            pcs = []
            if n + 2 < 8:
                pcs = self.dma_wq(n + 2, 0, PRING[(n + 2) % 4])
                px = self.dma_x(n + 2)
                px[0] = [Ins(f"v_accvgpr_read_b32 v{VDUM+1}, a{xf+15}")] + px[0]
                pcs = pcs + px
            for ch in ptail.get(n, ""):
                pcs += pmap[ch]()
            if n == 0:
                even(pcs, 0, 11)
            else:
                even(pcs, base - LA, 15)
        TL.at(127, [self.qcvt(VO, AQ), self.stamp("Pend")], prio=99)

        tlist = [n for n in range(16) if n not in u2map.values()]
        lastw = wsteps[-2:]
        pool = [8, 9, 5, 1, 6, 2] + [wslot[lastw[0]], 4, 0, wslot[lastw[1]]]
        tslot = [pool[k % 10] for k in range(len(tlist))]
        tw = lambda k: self.dma_wo(tlist[k], tslot[k])
        base = 128
        accinit = False
        for s in range(16):
            u, t = s >> 3, s & 7
            hasw = s in wslot
            nW = 16 if hasw else 0
            L = 32 + nW
            bg = base - LA - 1
            tags = [f"K{s}", f"V{s}"]
            if hasw:
                tags.append(f"Q1{s}" if s < 8 else f"T{u2map[s]}")
            TL.at(bg, [W(*tags, lgkm0=True), "s_barrier"], prio=90)
            TL.at(bg, self.stamp(f"A{s}"), prio=91)
            koff = (KSLOT[s % 3] - KSLOT[0]) * 16384
            la_t = LT if hasw else 12
            for m in range(16):
                kb, st = m >> 3, m & 7
                item = base + m
                d = v(VS + 16 * kb, 16)
                c = d if st else ("0" if t == 0 else v(VNEGM, 16))
                TL.mfma(f"{MF} {d}, {a(fq(item),4)}, {a(AQ+4*st,4)}, {c}")
                TL.at(item - LA, f"ds_read_b128 {a(fq(item),4)}, v{VKRD+st} offset:{koff + kb*8192}", prio=40)
            for m in range(nW):
                ks, nb = m >> 2, m & 3
                item = base + 16 + m
                d = v(VACC + 16 * nb, 16)
                first = (s == 0) if s < 8 else (not accinit)
                c = "0" if (first and ks == 0) else d
                bop = a(AB + 16 * s + 4 * ks, 4) if s < 8 else wo_bop(u2map[s], ks)
                TL.mfma(f"{MF} {d}, {a(fq(item),4)}, {bop}, {c}")
                TL.at(item - opt.get("lw", 10), self.tr_reads(item, wslot[s], ks, nb), prio=41)
            if hasw and s >= 8:
                accinit = True
            pv = base + 16 + nW
            for m in range(16):
                ks, db = m >> 2, m & 3
                item = pv + m
                d = v(VO + 16 * db, 16)
                c = "0" if (t == 0 and ks == 0) else d
                TL.mfma(f"{MF} {d}, {a(fq(item),4)}, {v(VP+4*ks,4)}, {c}")
                TL.at(item - (opt.get("lw", 10) if hasw else 12), self.tr_reads(item, VSLOT[s % 3], ks, db), prio=41)
            def maxchain(dst, r0):
                x = [f"v_max3_f32 v{dst}, v{r0}, v{r0+1}, v{r0+2}"]
                for k in range(3, 15, 2):
                    x.append(f"v_max3_f32 v{dst}, v{dst}, v{r0+k}, v{r0+k+1}")
                return x
            m0 = maxchain(VMX0, VS)
            for k, x in enumerate(m0):
                TL.at(base + 11 + k // 2, x, prio=50)
            mx = maxchain(VMX1, VS + 16)
            mx.append(f"v_max3_f32 v{VMX0}, v{VMX0}, v{VS+15}, v{VS+31}")
            mx.append(f"v_max_f32 v{VMX0}, v{VMX0}, v{VMX1}")
            chk = []
            if t == 0:
                chk += [f"v_mov_b32 v{VMX1}, v{VMX0}", f"v_permlane32_swap_b32 v{VMX0}, v{VMX1}",
                        f"v_max_f32 v{VMX0}, v{VMX0}, v{VMX1}"]
                for k in range(16):
                    chk.append(f"v_pk_add_f32 {v(VS+2*k,2)}, {v(VS+2*k,2)}, {v(VMX0,2)} op_sel_hi:[1,0] neg_lo:[0,1] neg_hi:[0,1]")
                for k in range(16):
                    TL.at(base + L - 4 + k // 4, f"v_sub_f32 v{VNEGM+k}, 0, v{VMX0}", prio=55)
            else:
                sk = self.lab("nors")
                chk += [f"v_cmp_lt_f32 vcc, s{sTHR}, v{VMX0}", f"s_cbranch_vccz {sk}"]
                chk += aside(f"s_call_b64 s[{sRET}:{sRET+1}], L_rescale")
                chk.append(f"{sk}:")
            EX = lambda k: f"v_exp_f32 v{VS+k}, v{VS+k}"
            CV = lambda k: f"v_cvt_pk_bf16_f32 v{VP+k}, v{VS+2*k}, v{VS+2*k+1}"
            def AD(k):
                l = VL0 if k % 2 == 0 else VL1
                return f"v_mov_b32 v{l}, v{VS+k}" if (t == 0 and k < 2) else f"v_add_f32 v{l}, v{l}, v{VS+k}"
            if hasw:
                for k, x in enumerate(mx):
                    TL.at(base + 18 + k // 3, x, prio=50)
                TL.at(base + 21, chk, prio=50)
                eg = [base + 22 + (2 * k) // 3 for k in range(32)]
                for k in range(32):
                    TL.at(eg[k], EX(k), prio=50)
                for k in range(16):
                    TL.at(eg[2 * k + 1] + 1, CV(k), prio=49)
                trail = (t != 7)
                for k in range(32):
                    if k < 16:
                        g_ = base + 38 + (k * 10) // 16
                    else:
                        g_ = base + L + (k - 16) // 2 if trail else base + 44 + (k - 16) // 4
                    TL.at(g_, AD(k), prio=52)
            else:
                TL.at(base + 15, [mx, chk, EX(0), EX(1), EX(2), EX(3), CV(0), EX(4), EX(5), CV(1), EX(6), EX(7), CV(2), CV(3)], prio=70)
                for ks in range(1, 4):
                    g0 = base + 16 + 4 * (ks - 1)
                    e0, c0 = 8 * ks, 4 * ks
                    TL.at(g0, [EX(e0), EX(e0 + 1), EX(e0 + 2)], prio=50)
                    TL.at(g0 + 1, [EX(e0 + 3), CV(c0), EX(e0 + 4), CV(c0 + 1)], prio=50)
                    TL.at(g0 + 2, [EX(e0 + 5), EX(e0 + 6), EX(e0 + 7)], prio=50)
                    TL.at(g0 + 3, [CV(c0 + 2), CV(c0 + 3)], prio=50)
                trail = (t != 7)
                addgap = [19, 19, 19, 23, 23, 23, 27, 27, 27, 28, 28, 29, 29, 30, 30, 31]
                for k in range(32):
                    if k < 16:
                        g_ = base + addgap[k]
                    else:
                        g_ = base + L + (k - 16) // 2 if trail else base + 28 + (k - 16) // 4
                    TL.at(g_, AD(k), prio=52)
            pcs = []
            if s == 0:
                for ch in "KVWkv":
                    if ch not in pdone:
                        pcs += pmap[ch]()
            if s + 1 in wslot:
                pcs += dma_w(s + 1)
            bstart = opt.get("bstart", 12)
            if bstart <= s < bstart + 3:
                pcs += bload(s - bstart)
            if s + 2 < 16:
                pcs += self.dma_k(s + 2) + self.dma_v(s + 2)
            n14, n15 = opt.get("tpre", (2, 3))
            if s == 14:
                for k in range(n14): pcs += tw(k)
            if s == 15:
                for k in range(n14, n14 + n15): pcs += tw(k)
            if s == 8:
                even(pcs, base + 15, 12)
            else:
                even(pcs, base - LA, L - 2)
            if s == 7:
                q2 = self.qcvt(VACC, AQ)
                for k, x in enumerate(q2):
                    TL.at(base + 35 + (k * 13) // 32, x, prio=70)
                TL.at(base + L - 1, [self.wo_offsets(), self.norm_head(), self.stamp("U1end")], prio=80)
            if s == 8:
                st = self.frag_ops("buffer_store_dwordx4", lambda f: a(AB + 4 * f, 4), sOOWN, 0, "O1")
                for k in range(32):
                    TL.at(base + (k * 15) // 32, self.norm_pair(k, dsta=AB), prio=53)
                    if k % 4 == 3:
                        TL.at(base + (k * 15) // 32 + 1, st[k >> 2], prio=45)
            if s == 6:
                TL.at(bg, [f"s_lshl_b32 s{sT3}, s{sB}, 4", self.poll_issue(SDBG, VZ, sT3)], prio=91)
            if s == 8:
                TL.at(bg, self.poll_check(SDBG, VZ, sT3, 16), prio=91)
            if s == 9:
                TL.at(base + opt.get("f1gap", 24), [W("O1"), self.flag_store(sFO, sI, 1)], prio=58)
            if s == bstart - 1:
                TL.at(bg, self.poll_issue(SWS, VFL, sFO), prio=91)
            if s == bstart:
                TL.at(bg, self.poll_check(SWS, VFL, sFO, 1), prio=91)
            if s == 15:
                st = self.frag_ops("buffer_store_dwordx4", lambda f: v(VS + 4 * f, 4), sOOWN, U2OFF, "O2")
                x = [self.stamp("Aend"), self.norm_head()]
                for k in range(32):
                    x.append(self.norm_pair(k, dstv=VS))
                    if k % 4 == 3:
                        x.append(st[k >> 2])
                TL.at(base + L - 1, x, prio=80)
            base += L

        tb = base
        nT = len(tlist)
        npre = nT - 6
        NB = opt.get("nb", 4)
        pst = [self.p_send(be) for be in range(3)]
        for k, n in enumerate(tlist):
            if k > nT - NB:
                break
            grp = [k] if k < nT - NB else list(range(k, nT))
            bg = base - LA - 1
            TL.at(bg, [W(*[f"T{tlist[q]}" for q in grp], lgkm0=(k == 0)), "s_barrier"], prio=90)
            TL.at(bg, self.stamp(f"T{k}"), prio=91)
            if len(grp) == 1:
                order = [(k, m >> 2, m & 3) for m in range(16)]
            else:
                order = [(q, ks, nb) for nb in range(4) for q in grp for ks in range(4)]
            for m, (q, ks, nb) in enumerate(order):
                item = base + m
                d = v(VACC + 16 * nb, 16)
                c = "0" if (not accinit and ks == 0) else d
                TL.mfma(f"{MF} {d}, {a(fq(item),4)}, {wo_bop(tlist[q], ks)}, {c}")
                TL.at(item - LA, self.tr_reads(item, tslot[q], ks, nb), prio=40)
            accinit = True
            if len(grp) > 1:
                per = 4 * len(grp)
                for be in range(3):
                    for kk, x in enumerate(pst[be]):
                        TL.at(base + per * (be + 1) + 2 + kk, x, prio=55)
            base += len(order)
        n14, n15 = opt.get("tpre", (2, 3))
        pcs = []
        for k in range(n14 + n15, min(nT, 10)): pcs += tw(k)
        even(pcs, tb, 16 * opt.get("tspan", 3))
        for k in range(10, nT):
            even(tw(k), tb + 16 * max(k - 8, opt.get("tspan", 3)) + 4 * (k - 10), 4)
        fg = tb + opt.get("flaggap", 16 * npre - 36)
        TL.at(fg, [W("O2"), self.flag_store(sFO, sI, 2), self.stamp("O2ack")], prio=58)
        cg = tb + opt.get("checkgap", 16 * npre - 6)
        TL.at(cg - opt.get("polld", 8), self.poll_issue(SWS, VFL, sFO), prio=58)
        TL.at(cg, [self.poll_check(SWS, VFL, sFO, 2), self.stamp("O2seen"), dload(0)], prio=58)
        even(dload(1) + dload(2), cg + 1, opt.get("dspan", 24))
        TL.flush(P)

        P.add(self.stamp("Tend"))
        P.add([W("PS"), self.flag_store(sFP, sG, 1)])
        P.add(self.stamp("Pack"))
        P.add(self.poll_issue(SWS, VFL, sFP))
        P.add(self.poll_check(SWS, VFL, sFP, 1))
        P.add(self.stamp("Pseen"))
        own = VACC + 48
        if self.p32:
            for be in range(3):
                P.add(self.frag_ops("buffer_load_dwordx4", lambda f: v(VO + 16 * be + 4 * f, 4), sPR + be, 0, "PR", nfr=4))
            for be in range(3):
                for k in range(8):
                    P.e(f"v_pk_add_f32 {v(own+2*k,2)}, {v(own+2*k,2)}, {v(VO+16*be+2*k,2)}")
        else:
            for be in range(3):
                P.add(self.frag_ops("buffer_load_dwordx4", lambda f: v(VS + 8 * be + 4 * f, 4), sPR + be, 0, "PR", nfr=2))
            for be in range(3):
                for k in range(8):
                    r = VS + 8 * be + k
                    t = VT + 2 * (k & 1)
                    P.e(f"v_lshlrev_b32 v{t}, 16, v{r}\nv_and_b32 v{t+1}, 0xffff0000, v{r}")
                    P.e(f"v_pk_add_f32 {v(own+2*k,2)}, {v(own+2*k,2)}, {v(t,2)}")
        for k in range(8):
            P.e(f"v_cvt_pk_bf16_f32 v{VP+k}, v{own+2*k}, v{own+2*k+1}")
        for uu in range(2):
            P.e(f"buffer_store_dwordx4 {v(VP+4*uu,4)}, v{VOUT}, {srd(SOUT)}, s{sOUTO} offen offset:{32*uu}")
        if self.stamps:
            P.add(W(vm0=True))
            P.add(self.stamp("end"))
            P.e(f"s_lshl_b32 s{sT0}, s2, 2\ns_add_u32 s{sT0}, s{sT0}, s{sW}\ns_lshl_b32 s{sT0}, s{sT0}, 6\ns_add_u32 s{sT0}, s{sT0}, {WS_STAMP}")
            for k in range(16):
                P.e(f"v_mov_b32 v{VO+k}, s{sSTAMP+k}")
            P.e("s_mov_b64 exec, 1")
            for k in range(4):
                P.e(f"buffer_store_dwordx4 {v(VO+4*k,4)}, v{VZ}, {srd(SWS)}, s{sT0} offen offset:{16*k}")
        P.e("L_end:\ns_endpgm")
        rs = ["L_rescale:", "s_nop 15",
              f"v_mov_b32 v{VMX1}, v{VMX0}", "s_nop 1", f"v_permlane32_swap_b32 v{VMX0}, v{VMX1}", "s_nop 1",
              f"v_max3_f32 v{VMX0}, v{VMX0}, v{VMX1}, 0",
              f"v_exp_f32 v{VT}, -v{VMX0}"]
        for k in range(16):
            rs.append(f"v_sub_f32 v{VNEGM+k}, v{VNEGM+k}, v{VMX0}")
        for k in range(32):
            rs.append(f"v_sub_f32 v{VS+k}, v{VS+k}, v{VMX0}")
        for k in range(64):
            rs.append(f"v_mul_f32 v{VO+k}, v{VO+k}, v{VT}")
        rs += [f"v_mul_f32 v{VL0}, v{VL0}, v{VT}", f"v_mul_f32 v{VL1}, v{VL1}, v{VT}", "s_nop 3",
               f"s_setpc_b64 s[{sRET}:{sRET+1}]", "L_codeend:"]
        P.add(aside("\n".join(rs)))
        body = P.finalize(eager=self.opt.get('eager', 3))
        self.stats = P.stats
        txt = HEADER + '.amdgcn_target "amdgcn-amd-amdhsa--gfx950"\n.text\n' + f".globl {NAME}\n.p2align 8\n.type {NAME},@function\n"
        txt += body
        txt += f""".section .rodata,"a"
.p2align 6
.amdhsa_kernel {NAME}
  .amdhsa_next_free_vgpr 512
  .amdhsa_next_free_sgpr 102
  .amdhsa_accum_offset 256
  .amdhsa_group_segment_fixed_size 0
  .amdhsa_kernarg_size 64
  .amdhsa_user_sgpr_count 2
  .amdhsa_user_sgpr_kernarg_segment_ptr 1
  .amdhsa_system_sgpr_workgroup_id_x 1
  .amdhsa_float_denorm_mode_32 3
.end_amdhsa_kernel
"""
        return txt


if __name__ == "__main__":
    out = sys.argv[1] if len(sys.argv) > 1 else "standalone__mha_block_cached__near_ridge.s"
    kw = {}
    for x in sys.argv[2:]:
        k, val = x.split("=", 1)
        kw[k] = eval(val)
    g = Gen(**kw)
    open(out, "w").write(g.build())
    print("stats", g.stats, "stamps", g.stampnames)
```

```python
import re

TRANS = ("v_exp_f32", "v_log_f32", "v_rcp_f32", "v_rsq_f32", "v_sqrt_f32", "v_sin_f32", "v_cos_f32")
_reg_re = re.compile(r"^-?(?:abs\()?([vas])(\d+)\)?$")
_rng_re = re.compile(r"^-?([vas])\[(\d+):(\d+)\]$")


def regs_of(op):
    op = op.strip()
    m = _reg_re.match(op)
    if m:
        return [m.group(1) + m.group(2)]
    m = _rng_re.match(op)
    if m:
        return [m.group(1) + str(i) for i in range(int(m.group(2)), int(m.group(3)) + 1)]
    if op in ("vcc", "m0", "exec"):
        return [op]
    return []


class Ins:
    def __init__(self, text, tag=None, aside=False, waittags=None, lgkm0=False, vm0=False, slot=None, priv=False, grp=None):
        self.grp = grp
        self.text = text
        self.slot = slot
        self.priv = priv
        self.tag = tag
        self.aside = aside
        self.waittags = waittags
        self.lgkm0 = lgkm0
        self.vm0 = vm0
        self.kind = None
        self.rd, self.wr, self.srcc, self.ab = set(), set(), set(), set()
        self.states = 1
        self.widestore = set()
        if text is not None and not aside:
            self.parse()

    def parse(self):
        t = self.text.split(";")[0].strip()
        if not t or t.endswith(":") or t.startswith("."):
            self.kind = "label"
            self.states = 0
            return
        sp = t.split(None, 1)
        op = sp[0]
        self.op = op
        rest = sp[1] if len(sp) > 1 else ""
        ops = [o.strip() for o in rest.split(",")]
        if ops:
            last = ops[-1].split()
            mods = last[1:]
            ops[-1] = last[0] if last else ""
        else:
            mods = []
        cut = []
        for o in [x.strip() for x in rest.split(",")]:
            w = o.split()
            if not w:
                continue
            cut.append(w[0])
            if len(w) > 1:
                break
        ops = cut
        R = [regs_of(o) for o in ops]
        allr = lambda l: set(r for x in l for r in x)
        words = rest.replace(",", " ").split()
        if op.startswith("v_mfma"):
            self.kind = "mfma"
            self.wr = set(R[0]); self.ab = allr(R[1:3]); self.srcc = set(R[3]); self.rd = self.ab | self.srcc
        elif op.startswith("ds_read"):
            self.kind = "ds"; self.wr = set(R[0]); self.rd = allr(R[1:])
        elif op.startswith("ds_"):
            self.kind = "ds"; self.rd = allr(R)
        elif op.startswith("buffer_load") or op.startswith("global_load"):
            self.kind = "vmem"
            if "lds" in words:
                self.rd = allr(R) | {"m0"}; self.dma = True
            else:
                self.wr = set(R[0]); self.rd = allr(R[1:])
        elif op.startswith("buffer_store") or op.startswith("buffer_atomic"):
            self.kind = "vmem"; self.rd = allr(R)
            if op.endswith("x4") or op.endswith("x3"):
                self.widestore = set(R[0])
        elif op.startswith("v_permlane"):
            self.kind = "valu"; self.rd = allr(R); self.wr = allr(R); self.permlane = True
        elif op.startswith("v_"):
            self.kind = "valu"
            self.wr = set(R[0]); self.rd = allr(R[1:])
            if op.startswith("v_fmac"):
                self.rd |= self.wr
            if any(op.startswith(x) for x in TRANS):
                self.trans = True
        elif op == "s_nop":
            self.kind = "nop"; self.states = int(ops[0]) + 1
        elif op in ("s_waitcnt", "s_barrier", "s_endpgm", "s_setprio") or op.startswith("s_cbranch") or op == "s_branch":
            self.kind = "sctl"
            if "vcc" in op:
                self.rd = {"vcc"}
        elif op.startswith("s_cmp") or op.startswith("s_setpc") or op.startswith("s_bitcmp"):
            self.kind = "salu"; self.rd = allr(R)
        elif op.startswith("s_load") or op.startswith("s_memrealtime") or op.startswith("s_memtime"):
            self.kind = "smem"; self.wr = set(R[0]); self.rd = allr(R[1:])
        elif op.startswith("s_"):
            self.kind = "salu"; self.wr = set(R[0]); self.rd = allr(R[1:])
        else:
            raise ValueError("unknown instruction " + t)

    def is_(self, name):
        return getattr(self, name, False)


def isv(r):
    return r[0] in "va" and r != "vcc"


def need_states(p, c):
    n = 0
    if p.kind == "valu":
        wv = set(r for r in p.wr if isv(r))
        ws = p.wr - wv
        if c.kind == "mfma" and wv & c.rd:
            n = max(n, 2)
        if c.kind == "valu":
            if p.is_("trans") and not c.is_("trans") and wv & c.rd:
                n = max(n, 1)
            if c.is_("permlane") and wv & c.rd:
                n = max(n, 2)
            if (c.op.startswith("v_readfirstlane") or c.op.startswith("v_readlane")) and wv & c.rd:
                n = max(n, 1)
            if ws & c.rd:
                n = max(n, 2)
        if c.kind == "vmem" and ws & c.rd:
            n = max(n, 5)
        if c.kind in ("salu", "sctl") and ws & c.rd:
            n = max(n, 1)
    elif p.kind == "mfma":
        if c.kind in ("valu", "ds", "vmem") and p.wr & (c.rd | c.wr):
            n = max(n, 12)
        if c.kind == "mfma":
            if p.wr & c.ab:
                n = max(n, 12)
            if p.wr & c.srcc and p.wr != c.srcc:
                n = max(n, 10)
            if p.wr & c.wr and p.wr != c.srcc:
                n = max(n, 10)
        if c.kind == "valu" and p.srcc & c.wr:
            n = max(n, 7)
    elif p.kind == "salu":
        if "m0" in p.wr and c.is_("dma"):
            n = max(n, 1)
    elif p.kind == "vmem":
        if p.widestore & c.wr:
            n = max(n, 2)
    return n


class Prog:
    def __init__(self):
        self.ins = []

    def e(self, text, tag=None):
        for line in text.strip().split("\n"):
            line = line.strip()
            if line:
                self.ins.append(Ins(line, tag=tag))

    def add(self, x):
        if isinstance(x, str):
            self.e(x)
        elif isinstance(x, Ins):
            self.ins.append(x)
        else:
            for y in x:
                self.add(y)

    def finalize(self, eager=0):
        out = []
        ds = []
        dsage = []
        nm = [0]
        vm = []
        stats = dict(nops=0, lgkm=0, vmw=0, maxvm=0)

        def emit(i):
            need = 0
            dist = 0
            for p in reversed(out):
                if p.aside:
                    continue
                if dist >= 12:
                    break
                need = max(need, need_states(p, i) - dist)
                dist += p.states
            if need > 0:
                out.append(Ins(f"s_nop {need-1}"))
                stats["nops"] += need
            out.append(i)

        def wait(nvm=None, nds=None):
            parts = []
            if nvm is not None:
                assert nvm <= 63
                parts.append(f"vmcnt({nvm})")
                del vm[:len(vm) - nvm]
                stats["vmw"] += 1
            if nds is not None:
                assert nds <= 15
                parts.append(f"lgkmcnt({nds})")
                del ds[:len(ds) - nds]
                stats["lgkm"] += 1
            if parts:
                out.append(Ins("s_waitcnt " + " ".join(parts)))

        for i in self.ins:
            if i.aside:
                out.append(i)
                continue
            nvm = nds = None
            if i.text is None:
                if i.waittags is not None:
                    idx = [k for k, (t, _) in enumerate(vm) if t in i.waittags]
                    if idx:
                        nvm = len(vm) - 1 - max(idx)
                if i.vm0 and vm:
                    nvm = 0
                if i.lgkm0 and ds:
                    nds = 0
                wait(nvm, nds)
                continue
            touched = i.rd | i.wr
            idx = [k for k, d in enumerate(ds) if d & touched]
            if idx:
                last = max(idx)
                if eager:
                    ages = dsage[len(dsage) - len(ds):]
                    while last + 1 < len(ds) and nm[0] - ages[last + 1] >= eager:
                        last += 1
                nds = len(ds) - 1 - last
            idx = [k for k, (_, d) in enumerate(vm) if d & touched]
            if idx:
                nvm = len(vm) - 1 - max(idx)
            if i.kind == "ds" and (len(ds) if nds is None else nds) >= 15:
                nds = 14
                if eager:
                    ages = dsage[len(dsage) - len(ds):]
                    while nds > 0 and nm[0] - ages[len(ds) - nds] >= eager:
                        nds -= 1
            if i.kind == "vmem" and (len(vm) if nvm is None else nvm) >= 63:
                nvm = 62
            wait(nvm, nds)
            if i.kind == "sctl" and i.op == "s_waitcnt":
                m = re.search(r"vmcnt\((\d+)\)", i.text)
                if m:
                    n = int(m.group(1)); del vm[:max(0, len(vm) - n)]
                m = re.search(r"lgkmcnt\((\d+)\)", i.text)
                if m:
                    n = int(m.group(1)); del ds[:max(0, len(ds) - n)]
            emit(i)
            if i.kind == "mfma":
                nm[0] += 1
            if i.kind == "ds":
                ds.append(set(i.wr)); dsage.append(nm[0])
            elif i.kind == "vmem":
                vm.append((i.tag, set(i.wr)))
                stats["maxvm"] = max(stats["maxvm"], len(vm))
        self.verify_lds(out)
        self.out = out
        self.stats = stats
        return "\n".join(("" if x.kind == "label" or (x.aside and x.text.rstrip().endswith(":")) else "  ") + x.text for x in out) + "\n"


def _verify_lds(self, out):
    ds, vm = [], []
    fill = {}
    reads = {}
    lastw = {}
    for i in out:
        if i.aside or i.kind in (None, "label"):
            continue
        if i.kind == "vmem" and i.grp is not None:
            for r in i.grp[1]:
                assert lastw.get(r) == i.grp[0], ("address register clobbered", i.text, r)
        for r in i.wr:
            lastw[r] = i.grp[0] if i.grp else None
        if i.kind == "sctl" and i.op == "s_waitcnt":
            m = re.search(r"vmcnt\((\d+)\)", i.text)
            if m:
                n = int(m.group(1))
                while len(vm) > n:
                    x = vm.pop(0)
                    if x is not None:
                        x["done"] = True
            m = re.search(r"lgkmcnt\((\d+)\)", i.text)
            if m:
                n = int(m.group(1))
                while len(ds) > n:
                    x = ds.pop(0)
                    if x is not None:
                        x["done"] = True
        elif i.kind == "sctl" and i.op == "s_barrier":
            for l in list(fill.values()) + list(reads.values()):
                for x in l:
                    if x["done"]:
                        x["bar"] = True
        elif i.kind == "ds":
            x = None
            if i.slot is not None:
                l = fill.get(i.slot, [])
                assert len(l) == 4 and all(y["tag"] == i.tag for y in l), ("read of wrong tile", i.text, i.tag, i.slot, [y["tag"] for y in l])
                assert all(y["done"] and (y["bar"] or i.priv) for y in l), ("read before tile is visible", i.text, i.tag)
                x = dict(done=False, bar=False, priv=i.priv)
                reads.setdefault(i.slot, []).append(x)
            ds.append(x)
        elif i.kind == "vmem":
            x = None
            if i.slot is not None:
                for y in reads.get(i.slot, []):
                    assert y["done"] and (y["bar"] or y["priv"]), ("fill before the slot is free", i.text, i.tag, i.slot)
                l = fill.get(i.slot, [])
                if l and l[0]["tag"] != i.tag:
                    assert reads.get(i.slot), ("tile overwritten unread", i.tag, l[0]["tag"])
                    l = []
                reads[i.slot] = []
                x = dict(done=False, bar=False, tag=i.tag)
                fill[i.slot] = l + [x]
            vm.append(x)


Prog.verify_lds = _verify_lds


def W(*tags, lgkm0=False, vm0=False):
    return Ins(None, waittags=set(tags), lgkm0=lgkm0, vm0=vm0)


def aside(text):
    return [Ins(l.strip(), aside=True) for l in text.strip().split("\n") if l.strip()]


def T(text, tag):
    return [Ins(l.strip(), tag=tag) for l in text.strip().split("\n") if l.strip()]


def flat(x):
    if isinstance(x, (str, Ins)):
        return [x]
    return [z for y in x for z in flat(y)]


def cost_of(x):
    c = 0
    for i in flat(x):
        t = i if isinstance(i, str) else i.text
        if isinstance(i, Ins) and i.aside:
            continue
        if t is None:
            c += 4
            continue
        for l in t.strip().split("\n"):
            l = l.strip()
            if not l or l.endswith(":"):
                continue
            if l.startswith("buffer_") or l.startswith("global_"):
                c += 16
            elif l.startswith("v_pk_"):
                c += 16
            elif any(l.startswith(q) for q in TRANS):
                c += 8
            elif l.startswith("s_cbranch") or l.startswith("s_barrier"):
                c += 8
            else:
                c += 4
    return c


class Timeline:
    def __init__(self, budget=22):
        self.m = []
        self.fill = {}
        self.seq = 0
        self.chains = []
        self.budget = budget

    def mfma(self, text):
        self.m.append(text)
        return len(self.m) - 1

    def at(self, gap, x, prio=50):
        gap = max(gap, -1)
        self.seq += 1
        self.fill.setdefault(gap, []).append((prio, self.seq, x))

    def chain(self, pieces, prio=50, rate=16, maxper=99):
        ps = [dict(x=x, lo=max(lo, -1), hi=max(hi, -1), c=cost_of(x)) for x, lo, hi in pieces]
        for k in range(1, len(ps)):
            ps[k]["lo"] = max(ps[k]["lo"], ps[k - 1]["lo"])
        t, acc = None, 0
        for p in reversed(ps):
            if t is None or p["hi"] <= t - acc / rate:
                t, acc = p["hi"], 0
            p["soft"] = t - acc / rate
            acc += p["c"]
        h = 10 ** 9
        for p in reversed(ps):
            h = min(h, p["hi"])
            p["hi"] = h
            assert p["lo"] <= p["hi"], ("empty window", p)
        self.chains.append(dict(ps=ps, k=0, prio=prio, maxper=maxper))

    def schedule(self):
        carry = 0
        self.load = {}
        for g in range(-1, len(self.m)):
            used = sum(cost_of(x) for _, _, x in self.fill.get(g, []))
            cnt = {}
            while True:
                best = None
                for ci, c in enumerate(self.chains):
                    if c["k"] >= len(c["ps"]):
                        continue
                    p = c["ps"][c["k"]]
                    if p["lo"] > g:
                        continue
                    forced = p["hi"] <= g
                    if not forced:
                        if cnt.get(ci, 0) >= c["maxper"]:
                            continue
                        late = p["soft"] <= g
                        if used + p["c"] > self.budget + carry + (6 if late else 0) and not (used == 0):
                            continue
                    key = (0 if forced else 1, p["soft"])
                    if best is None or key < best[0]:
                        best = (key, ci, c, p)
                if best is None:
                    break
                _, ci, c, p = best
                self.at(g, p["x"], c["prio"])
                used += p["c"]
                cnt[ci] = cnt.get(ci, 0) + 1
                c["k"] += 1
            self.load[g] = used
            carry = max(-8, min(6, self.budget - used)) if used > self.budget else 0
        for c in self.chains:
            assert c["k"] == len(c["ps"])

    def flush(self, prog):
        self.schedule()
        for k in range(-1, len(self.m)):
            if k >= 0:
                prog.add(self.m[k])
            for _, _, x in sorted(self.fill.get(k, []), key=lambda z: (z[0], z[1])):
                prog.add(x)
        assert all(k < len(self.m) for k in self.fill)
```

```python
import sys, struct, math
from asmlib import Prog, Timeline, W, aside, T, Ins, flat

NAME = "standalone__mha_block_cached__near_ridge_kernel"

HEADER = """; Kernarg layout for this problem (64 bytes, ptrs only, base s[0:1]):
; One workgroup per (batch, head pair): Q projection -> attention (2 heads) -> split-K output projection.
; @launch grid=(256,1,1) block=(256,1,1) lds=163840
"""


def f2u(x):
    return struct.unpack("<I", struct.pack("<f", x))[0]


VO = 0
VACC = 64
OU = [0, 64]
OACC = 0
VS = 128
VNEGM = 160
VP = 176
VKRD = 192
VTR = 200
VKD = 212
VVD = 216
VWD = 217
VXD = 221
VXR = 225
VFR = 229
VOUT = 230
VFL = 231
VL0, VL1, VMX0, VMX1 = 232, 233, 234, 235
VT = 236
VPOLL = 248
VZ = 249
VDUM = 250
VE = 221
VLB = 253
VBIAS = 252
AQ = 0
ASP = 32
AF = 64
NF = 16
AB = 128

SX, SK, SV, SWQ, SWO, SOUT, SDBG, SWS = 8, 12, 16, 20, 24, 28, 32, 36
sW, sB, sG, sI, sROT, sLW, sKV, sXB, sWQB = 40, 41, 42, 43, 44, 45, 46, 47, 48
sT0, sT1, sT2, sT3 = 49, 50, 51, 52
sSOX, sSOW, sSOK = 53, 54, 55
sHB = 56
sRET = 60
sSPIN, sTHR, sC = 62, 63, 64
sFO, sFP, sOOWN = 66, 67, 68
sOP = 69
sPS = 72
sPR = 75
sOUTO = 78
sKROT = 79
sSTAMP = 80
sTM = 96
sPM = 100

OOB = 0x7F000000
WS_FO, WS_FP, WS_O = 0, 32768, 65536
WS_P = WS_O + 2 * 256 * 4 * 7168
WS_STAMP = 0x2000000
WS_SIZE = 0x2100000

KSLOT, VSLOT, PRING, XSLOT, WSLOT = [4, 5, 6], [0, 1, 2], [1, 2, 6, 7], [8, 9], [3, 7]


def srd(n):
    return f"s[{n}:{n+3}]"


def v(n, k=1):
    return f"v{n}" if k == 1 else f"v[{n}:{n+k-1}]"


def a(n, k=1):
    return f"a{n}" if k == 1 else f"a[{n}:{n+k-1}]"


def fq(item):
    return AF + 4 * (item % NF)


class Gen:
    def __init__(self, stamps=False, p32=False, kvflag=" nt", wflag="", xflag="", thr=1024.0, **opt):
        self.stamps = stamps
        self.p32 = p32
        self.kvflag, self.wflag, self.xflag = kvflag, wflag, xflag
        self.thr = thr
        self.opt = opt
        self.nlab = 0
        self.nx = self.nq = 0
        self.nstamp = 0
        self.rare = []
        self.rnames = set()
        self.stampnames = []

    def lab(self, s):
        self.nlab += 1
        return f"L_{s}_{self.nlab}"

    def stamp(self, name):
        if not self.stamps:
            return []
        sel = self.opt.get("sel", ("P0", "Pend", "U1end", "Aend", "O2ack", "O2seen", "Tend", "Pack", "Pseen", "end"))
        if name not in sel or self.opt.get("fine"):
            return []
        if self.opt.get("cyc"):
            k = self.nstamp; self.nstamp += 1; self.stampnames.append(name)
            return [W(lgkm0=True), Ins(f"s_memtime s[{sTM}:{sTM+1}]"), Ins("s_waitcnt lgkmcnt(0)"), Ins(f"s_mov_b32 s{sSTAMP+k}, s{sTM}")]
        k = self.nstamp
        self.nstamp += 1
        self.stampnames.append(name)
        assert k < 16
        return [W(lgkm0=True), Ins(f"s_memrealtime s[{sTM}:{sTM+1}]"), Ins("s_waitcnt lgkmcnt(0)"),
                Ins(f"s_mov_b32 s{sSTAMP+k}, s{sTM}")]

    def dma_tile(self, slot, voffs, srdn, soff, flag, tag, pre=""):
        grp = (self.lab("g"), ("m0", f"s{soff}"))
        x = [Ins(f"s_add_u32 m0, s{sLW}, {slot*16384}", grp=grp)]
        x += [Ins(l, grp=grp) for l in pre.strip().split("\n")]
        pieces = [x]
        for jj in range(4):
            vo = voffs[jj] if isinstance(voffs, list) else voffs
            pieces.append([Ins(f"buffer_load_dwordx4 v{vo}, {srd(srdn)}, s{soff} offen offset:{jj*1024}{flag} lds", tag=tag, slot=slot, grp=grp)])
        return pieces

    def dma_x(self, p):
        assert p == self.nx
        self.nx += 1
        pre = f"s_lshl_b32 s{sSOX}, s{sROT}, 7" if p == 0 else f"s_add_u32 s{sSOX}, s{sSOX}, 128\ns_and_b32 s{sSOX}, s{sSOX}, 0x3ff"
        return self.dma_tile(XSLOT[p & 1], [VXD + j for j in range(4)], SX, sSOX, self.xflag, f"X{p}", pre)

    def dma_wq(self, p, sel, slot):
        assert 8 * sel + p == self.nq, "wq tiles must be issued in order"
        self.nq += 1
        if self.nq == 1:
            pre = f"s_lshl_b32 s{sSOW}, s{sROT}, 19"
        else:
            pre = f"s_add_u32 s{sSOW}, s{sSOW}, {0x80100 if self.nq == 9 else 0x80000}\ns_and_b32 s{sSOW}, s{sSOW}, 0x3fffff"
        return self.dma_tile(slot, [VWD + j for j in range(4)], SWQ, sSOW, self.wflag, f"Q{sel}{p}", pre)

    def dma_k(self, s):
        return self.dma_tile(KSLOT[s % 3], [VKD + j for j in range(4)], SK, sSOK, self.kvflag, f"K{s}", f"s_mov_b32 s{sSOK}, {s*16384}")

    def dma_v(self, s):
        return self.dma_tile(VSLOT[s % 3], VVD, SV, sSOK, self.kvflag, f"V{s}", f"s_mov_b32 s{sSOK}, {s*16384}")

    def t_info(self, n):
        return (n % 8) // 2, n // 8

    def dma_wo(self, n, slot):
        j, u = self.t_info(n)
        pre = f"s_add_u32 s{sSOW}, s{sHB+j}, {u*131072 + (n & 1)*65536}"
        return self.dma_tile(slot, [VWD + jj for jj in range(4)], SWO, sSOW, self.wflag, f"T{n}", pre)

    def tr_reads(self, item, slot, ks, db, tag):
        r = fq(item)
        adr = VTR + 4 * (slot >> 2) + db
        off = (slot & 3) * 16384 + ks * 4096
        return [Ins(f"ds_read_b64_tr_b16 {a(r,2)}, v{adr} offset:{off}", tag=tag, slot=slot),
                Ins(f"ds_read_b64_tr_b16 {a(r+2,2)}, v{adr} offset:{off+1024}", tag=tag, slot=slot)]

    def poll_issue(self, srdn, voff, soff):
        return Ins(f"buffer_load_dword v{VPOLL}, v{voff}, {srd(srdn)}, s{soff} offen sc1", tag="poll")

    def poll_check(self, srdn, voff, soff, need):
        ok, sp = self.lab("ok"), self.lab("spin")
        x = [Ins(f"v_cmp_gt_u32 s[{sPM}:{sPM+1}], {need}, v{VPOLL}"), Ins(f"s_cmp_eq_u64 s[{sPM}:{sPM+1}], 0"), Ins(f"s_cbranch_scc1 {ok}")]
        x += aside(f"""
            s_mov_b32 s{sSPIN}, 0x40000
            {sp}:
            buffer_load_dword v{VPOLL}, v{voff}, {srd(srdn)}, s{soff} offen sc1
            s_waitcnt vmcnt(0)
            v_cmp_gt_u32 s[{sPM}:{sPM+1}], {need}, v{VPOLL}
            s_sub_u32 s{sSPIN}, s{sSPIN}, 1
            s_cmp_eq_u32 s{sSPIN}, 0
            s_cbranch_scc1 {ok}
            s_cmp_lg_u64 s[{sPM}:{sPM+1}], 0
            s_cbranch_scc1 {sp}
            """)
        x.append(Ins(f"{ok}:"))
        return x

    def flag_store(self, soff, sidx, val):
        return [Ins(f"v_mov_b32 v{VT+10}, {val}"), Ins(f"s_lshl_b32 s{sT1}, s{sidx}, 2"), Ins(f"s_add_u32 s{sT1}, s{sT1}, s{soff}"),
                Ins("s_mov_b64 exec, 1"),
                Ins(f"buffer_store_dword v{VT+10}, v{VZ}, {srd(SWS)}, s{sT1} offen sc1", tag="flag"),
                Ins("s_mov_b64 exec, -1")]

    def frag_ops(self, op, regs, soff, extra, tag, nfr=8):
        x = []
        for f in range(nfr):
            y = []
            if f % 4 == 0:
                grp = (self.lab("g"), (f"s{sT2}",))
                y.append(Ins(f"s_add_u32 s{sT2}, s{soff}, {extra + f*896}", grp=grp))
            y.append(Ins(f"{op} {regs(f)}, v{VFR}, {srd(SWS)}, s{sT2} offen offset:{(f % 4)*896} sc1", tag=tag, grp=grp))
            x.append(y)
        return x

    def p_send(self, be):
        VACC, VO = OACC, OU[1]
        if self.p32:
            return self.frag_ops("buffer_store_dwordx4", lambda f: v(VACC + 16 * be + 4 * f, 4), sPS + be, 0, "PS", nfr=4)
        st = self.frag_ops("buffer_store_dwordx4", lambda f: v(VO + 8 * be + 4 * f, 4), sPS + be, 0, "PS", nfr=2)
        cv = [f"v_cvt_pk_bf16_f32 v{VO+8*be+k}, v{VACC+16*be+2*k}, v{VACC+16*be+2*k+1}" for k in range(8)]
        return [cv[0:2], cv[2:4], [st[0]] + cv[4:6], cv[6:8], st[1]]

    def qcvt(self, acc, dst):
        x = []
        for k in range(32):
            r = acc + 2 * k
            x += [f"v_mul_f32 v{r}, s{sC}, v{r}", f"v_mul_f32 v{r+1}, s{sC}, v{r+1}",
                  f"v_cvt_pk_bf16_f32 v{r}, v{r}, v{r+1}", f"v_accvgpr_write_b32 a{dst+k}, v{r}"]
        return x

    def norm_head(self):
        return [f"v_mov_b32 v{VT+1}, v{VL0}",
                f"v_permlane32_swap_b32 v{VL0}, v{VT+1}",
                f"v_add_f32 v{VT}, v{VL0}, v{VT+1}",
                f"v_max_f32 v{VT}, v{VT}, v{VBIAS}",
                f"v_rcp_f32 v{VT}, v{VT}"]

    def norm_pair(self, VO, k, dstv=None, dsta=None, packed=False):
        r = VO + 2 * k
        if packed:
            x = [f"v_pk_mul_f32 {v(r,2)}, {v(r,2)}, {v(VT,2)} op_sel_hi:[1,0]"]
        else:
            x = [f"v_mul_f32 v{r}, v{r}, v{VT}", f"v_mul_f32 v{r+1}, v{r+1}, v{VT}"]
        if dstv is not None:
            x.append(f"v_cvt_pk_bf16_f32 v{dstv+k}, v{r}, v{r+1}")
        else:
            x += [f"v_cvt_pk_bf16_f32 v{r}, v{r}, v{r+1}", f"v_accvgpr_write_b32 a{dsta+k}, v{r}"]
        return x

    def setup(self, P):
        e = P.e
        e(f"s_cmp_ge_u32 s2, 256\ns_cbranch_scc1 L_end")
        e(f"s_load_dwordx16 s[{80}:{95}], s[0:1], 0")
        if self.stamps:
            e(f"s_memtime s[98:99]" if self.opt.get("cyc") else "s_memrealtime s[98:99]")
        e(f"""
            v_lshrrev_b32 v1, 6, v0
            v_and_b32 v2, 63, v0
            v_readfirstlane_b32 s{sW}, v1
            s_and_b32 s{sG}, s2, 3
            s_lshr_b32 s{sT0}, s2, 3
            s_and_b32 s{sI}, s{sT0}, 3
            s_lshr_b32 s{sT1}, s{sT0}, 2
            s_lshl_b32 s{sB}, s2, 1
            s_and_b32 s{sB}, s{sB}, 8
            s_add_u32 s{sB}, s{sB}, s{sT1}
            s_lshl_b32 s{sROT}, s{sI}, 1
            s_add_u32 s{sROT}, s{sROT}, s{sT1}
            s_and_b32 s{sROT}, s{sROT}, 7
            s_lshl_b32 s{sLW}, s{sW}, 12
            s_lshl_b32 s{sT2}, s{sG}, 2
            s_add_u32 s{sT2}, s{sT2}, s{sI}
            s_lshl_b32 s{sWQB}, s{sT2}, 9
            s_lshl_b32 s{sT3}, s{sB}, 4
            s_add_u32 s{sT3}, s{sT3}, s{sT2}
            s_lshl_b32 s{sKV}, s{sT3}, 18
            s_mul_i32 s{sXB}, s{sB}, 114688
        """)
        e(f"""
            v_lshrrev_b32 v3, 4, v2
            v_and_b32 v4, 15, v2
            v_lshlrev_b32 v5, 2, v3
            v_xor_b32 v5, v5, v4
            v_lshl_add_u32 v6, v1, 4, v3
        """)
        e(f"""
            v_lshrrev_b32 v7, 3, v2
            v_mad_u32_u24 v7, v1, 28, v7
            v_lshlrev_b32 v7, 10, v7
            v_and_b32 v8, 7, v2
            v_xor_b32 v8, v8, v3
            v_lshl_add_u32 v{VXD}, v8, 4, v7
            v_xor_b32 v8, 4, v8
            v_lshl_add_u32 v9, v8, 4, v7
            v_mov_b32 v10, {OOB}
            v_cmp_gt_u32 vcc, 48, v2
            v_add_u32 v{VXD+2}, {12*1024}, v{VXD}
            v_add_u32 v9, {7*1024}, v9
            v_cndmask_b32 v{VXD+1}, v10, v9, vcc
            v_add_u32 v{VXD+3}, {12*1024}, v{VXD+1}
        """)
        e(f"""
            v_lshlrev_b32 v7, 13, v6
            v_lshl_add_u32 v{VWD}, v5, 4, v7
            v_add_u32 v{VWD+1}, {32768-1024}, v{VWD}
            v_add_u32 v{VWD+2}, {2*(32768-1024)}, v{VWD}
            v_add_u32 v{VWD+3}, {3*(32768-1024)}, v{VWD}
        """)
        e(f"""
            s_getpc_b64 s[{sTM}:{sTM+1}]
            L_pc0:
            s_sub_u32 s{sTM}, s{sTM}, L_pc0-{NAME}
            s_subb_u32 s{sTM+1}, s{sTM+1}, 0
            s_lshl_b32 s{sT1}, s{sT0}, 11
            v_and_b32 v7, 3, v2
            v_lshl_add_u32 v7, v1, 2, v7
            v_lshl_add_u32 v7, v7, 7, s{sT1}
            v_min_u32 v7, L_codeend-{NAME}-4, v7
        """)
        e("s_waitcnt lgkmcnt(0)")
        sizes = [(SX, 1835008), (SK, 67108864), (SV, 67108864), (SWQ, 4194304), (SWO, 4194304), (SOUT, 1835008), (SDBG, 256), (SWS, WS_SIZE)]
        def mksrd(k):
            n, sz = sizes[k]
            fold = {SX: (sXB, 114688), SK: (sKV, 262144), SV: (sKV, 262144), SWQ: (sWQB, None)}.get(n)
            if fold:
                e(f"s_add_u32 s{n}, s{80+2*k}, s{fold[0]}\ns_addc_u32 s{n+1}, s{81+2*k}, 0")
                e(f"s_mov_b32 s{n+2}, {fold[1]}" if fold[1] else f"s_sub_u32 s{n+2}, {sz}, s{fold[0]}")
            else:
                e(f"s_mov_b64 s[{n}:{n+1}], s[{80+2*k}:{81+2*k}]\ns_mov_b32 s{n+2}, {sz}")
            e(f"s_mov_b32 s{n+3}, 0x20000")
        mksrd(0); mksrd(3)
        P.add(self.dma_x(0)); P.add(self.dma_wq(0, 0, PRING[0]))
        e(f"global_load_dword v{VDUM}, v7, s[{sTM}:{sTM+1}]", tag="pf")
        P.add(self.dma_x(1)); P.add(self.dma_wq(1, 0, PRING[1]))
        for k in (1, 2, 4, 5, 6, 7):
            mksrd(k)
        if self.stamps:
            e(f"s_mov_b32 s{sSTAMP}, s98")
            self.nstamp = 1; self.stampnames.append("start")
        e(f"""
            v_and_b32 v11, 31, v2
            v_lshrrev_b32 v12, 5, v2
            v_mov_b32 v{VZ}, 0
        """)
        e(f"""
            s_lshl_b32 s{sT0}, s{sB}, 2
            s_add_u32 s{sT1}, s{sT0}, s{sG}
            s_lshl_b32 s{sT1}, s{sT1}, 2
            s_add_u32 s{sT1}, s{sT1}, s{sW}
            s_lshl_b32 s{sFO}, s{sT1}, 7
            s_add_u32 s{sT1}, s{sT0}, s{sI}
            s_lshl_b32 s{sT1}, s{sT1}, 2
            s_add_u32 s{sT1}, s{sT1}, s{sW}
            s_lshl_b32 s{sT1}, s{sT1}, 7
            s_add_u32 s{sFP}, s{sT1}, {WS_FP}
            s_lshl_b32 s{sT0}, s{sI}, 2
            s_add_u32 s{sT0}, s{sT0}, s{sFO}
            s_lshl_b32 s{sT1}, s{sG}, 2
            s_add_u32 s{sT1}, s{sT1}, s{sFP}
            v_mov_b32 v7, s{sT0}
            v_mov_b32 v8, s{sT1}
            v_cmp_eq_u32 vcc, 0, v2
            v_cndmask_b32 v7, v8, v7, vcc
            s_mov_b64 exec, 3
        """)
        e(f"buffer_store_dword v{VZ}, v7, {srd(SWS)}, 0 offen sc1", tag="clr")
        e("s_mov_b64 exec, -1")
        e(f"""
            v_lshrrev_b32 v7, 1, v11
            v_and_b32 v7, 7, v7
            v_xor_b32 v7, v7, v12
            v_lshlrev_b32 v8, 7, v11
            v_lshl_add_u32 v8, v1, 12, v8
            v_add_u32 v8, {XSLOT[0]*16384}, v8
        """)
        for ks in range(4):
            e(f"v_xor_b32 v9, {2*ks}, v7\nv_lshl_add_u32 v{VXR+ks}, v9, 4, v8")
        e(f"""
            v_bfe_u32 v7, v2, 2, 2
            v_lshl_add_u32 v8, v12, 3, v7
            v_lshlrev_b32 v8, 8, v8
            v_bfe_u32 v9, v2, 4, 1
            v_lshl_add_u32 v8, v9, 5, v8
            v_and_b32 v9, 1, v2
            v_lshl_add_u32 v8, v9, 4, v8
            v_bfe_u32 v9, v2, 1, 1
            v_lshl_add_u32 v8, v9, 3, v8
        """)
        for db in range(4):
            e(f"v_xor_b32 v9, {db}, v7\nv_lshl_add_u32 v{VTR+db}, v9, 6, v8")
            e(f"v_add_u32 v{VTR+4+db}, 0x10000, v{VTR+db}\nv_add_u32 v{VTR+8+db}, 0x20000, v{VTR+db}")
        e(f"v_lshlrev_b32 v7, 8, v6\nv_lshl_add_u32 v{VVD}, v5, 4, v7\nv_xor_b32 v8, v4, v3")
        for jj in range(4):
            e(f"v_xor_b32 v9, {4*jj}, v8\nv_lshl_add_u32 v{VKD+jj}, v9, 4, v7")
        e(f"""
            v_and_b32 v7, 0x13, v11
            v_bfe_u32 v8, v11, 2, 1
            v_lshl_add_u32 v7, v8, 3, v7
            v_bfe_u32 v8, v11, 3, 1
            v_lshl_add_u32 v7, v8, 2, v7
            v_and_b32 v8, 15, v7
            v_xor_b32 v8, v8, v12
            v_lshlrev_b32 v7, 8, v7
            v_add_u32 v7, {KSLOT[0]*16384}, v7
        """)
        for s in range(8):
            e(f"v_xor_b32 v9, {2*s}, v8\nv_lshl_add_u32 v{VKRD+s}, v9, 4, v7")
        e(f"""
            v_bfe_u32 v9, v2, 4, 1
            v_mad_u32_u24 v9, v9, 14, v4
            v_mad_u32_u24 v7, v12, 28, v9
            v_lshlrev_b32 v7, 4, v7
            v_mad_u32_u24 v8, v1, 28, v9
            v_lshlrev_b32 v8, 10, v8
            v_lshl_add_u32 v8, v12, 4, v8
            v_cmp_gt_u32 vcc, 14, v4
            v_mov_b32 v9, 0xff800000
            v_mov_b32 v{VBIAS}, {f2u(16384.0)}
            v_cndmask_b32 v{VFR}, v10, v7, vcc
            v_cndmask_b32 v{VOUT}, v10, v8, vcc
            v_cndmask_b32 v{VBIAS}, v{VBIAS}, v9, vcc
            v_and_b32 v7, 3, v2
            v_lshlrev_b32 v{VFL}, 2, v7
        """)
        e(f"v_mov_b32 v{VT+8}, v6\nv_mov_b32 v{VT+9}, v5")
        c = math.log2(math.e) / math.sqrt(128.0)
        e(f"s_mov_b32 s{sC}, {f2u(c)}\ns_mov_b32 s{sC+1}, {f2u(c)}\ns_mov_b32 s{sTHR}, {f2u(self.thr)}")
        PB = 3584 if self.p32 else 1792
        e(f"""
            s_lshl_b32 s{sT0}, s{sT3}, 2
            s_add_u32 s{sT0}, s{sT0}, s{sW}
            s_mul_i32 s{sT0}, s{sT0}, 7168
            s_add_u32 s{sOOWN}, s{sT0}, {WS_O}
            s_lshl_b32 s{sT0}, s{sG}, 6
            s_lshl_b32 s{sT1}, s{sI}, 8
            s_add_u32 s{sT0}, s{sT0}, s{sT1}
            s_add_u32 s{sOUTO}, s{sT0}, s{sXB}
        """)
        for j in range(4):
            e(f"""
                s_add_u32 s{sT0}, s{sI}, {j}
                s_and_b32 s{sT0}, s{sT0}, 3
                s_lshl_b32 s{sT1}, s{sG}, 2
                s_add_u32 s{sT1}, s{sT1}, s{sT0}
                s_lshl_b32 s{sT2}, s{sT1}, 18
                s_lshl_b32 s{sHB+j}, s{sI}, 8
                s_add_u32 s{sHB+j}, s{sHB+j}, s{sT2}
            """)
            if j:
                e(f"""
                    s_sub_i32 s{sT0}, s{sT0}, s{sI}
                    s_mul_i32 s{sT0}, s{sT0}, {4*7168}
                    s_add_i32 s{sOP+j-1}, s{sOOWN}, s{sT0}
                """)
        e(f"s_lshl_b32 s{sT3}, s{sB}, 2\ns_add_u32 s{sT3}, s{sT3}, s{sI}\ns_lshl_b32 s{sT3}, s{sT3}, 6\ns_add_u32 s{sT3}, s{sT3}, s{sW}")
        for be in range(3):
            e(f"""
                s_add_u32 s{sT0}, s{sG}, {be+1}
                s_and_b32 s{sT0}, s{sT0}, 3
                s_lshl_b32 s{sT1}, s{sT0}, 2
                s_add_u32 s{sT1}, s{sT1}, s{sG}
                s_lshl_b32 s{sT1}, s{sT1}, 2
                s_add_u32 s{sT1}, s{sT1}, s{sT3}
                s_mul_i32 s{sT1}, s{sT1}, {PB}
                s_add_u32 s{sPS+be}, s{sT1}, {WS_P}
                s_lshl_b32 s{sT1}, s{sG}, 2
                s_add_u32 s{sT1}, s{sT1}, s{sT0}
                s_lshl_b32 s{sT1}, s{sT1}, 2
                s_add_u32 s{sT1}, s{sT1}, s{sT3}
                s_mul_i32 s{sT1}, s{sT1}, {PB}
                s_add_u32 s{sPR+be}, s{sT1}, {WS_P}
            """)

    def wo_offsets(self):
        x = [f"s_add_u32 s{sT0}, s{sG}, 1", f"s_lshl_b32 s{sT0}, s{sT0}, 2",
             f"v_add_u32 v{VT+9}, s{sT0}, v{VT+9}", f"v_and_b32 v{VT+9}, 15, v{VT+9}",
             f"v_lshlrev_b32 v{VT+8}, 10, v{VT+8}",
             f"v_lshl_add_u32 v{VWD}, v{VT+9}, 4, v{VT+8}"]
        for jj in range(1, 4):
            x.append(f"v_add_u32 v{VWD+jj}, {jj*3072}, v{VWD}")
        return x

    def build(self):
        P = Prog()
        P.e(f"{NAME}:")
        self.setup(P)
        opt = self.opt
        TL = Timeline(budget=opt.get("budget", 24))
        MF = "v_mfma_f32_32x32x16_bf16"
        LA = opt.get("la", 6)
        RLO, RHI = opt.get("rlo", LA + 1), opt.get("rhi", LA)
        U2OFF = 256 * 4 * 7168
        DREG = [AQ, ASP, AB]
        rd = []
        vm = []
        def bload(j):
            return self.frag_ops("buffer_load_dwordx4", lambda f: a(AB + 32 * (j + 1) + 4 * f, 4), sOP + j, 0, f"B{j}")
        def dload(j):
            return self.frag_ops("buffer_load_dwordx4", lambda f: a(DREG[j] + 4 * f, 4), sOP + j, U2OFF, f"D{j}")
        def even(pcs, g0, g1):
            isld = [any(isinstance(i, Ins) and i.kind == "vmem" for i in flat(p)) for p in pcs]
            n = max(sum(isld), 1)
            k = 0
            for p, ld in zip(pcs, isld):
                lo = g0 + (k * (g1 - g0 + 1)) // n
                if ld:
                    k += 1
                    vm.append((p, lo, min(lo + 2, g1)))
                else:
                    vm.append((p, max(lo - 1, g0), min(lo + 1, g1)))
        def wo_bop(n, ks):
            j, u = self.t_info(n)
            fo = 16 * (n & 1) + 4 * ks
            if u == 0:
                return a(AB + 32 * j + fo, 4)
            return v(VS + fo, 4) if j == 0 else a(DREG[j - 1] + fo, 4)
        def read(x, item, first, last=10 ** 9):
            lo = max(item - RLO, first)
            rd.append((x, min(lo, last), max(min(item - RHI, last), first)))

        nP2 = opt.get("np2", 2)
        nP = 8 + nP2
        u2map = opt.get("u2", {10: 0, 12: 1, 14: 2, 15: 3})
        q2steps = opt.get("q2", list(range(8 - nP2)))
        q2map = {s: nP2 + k for k, s in enumerate(q2steps)}
        wsteps = sorted(list(q2map) + list(u2map))
        WA = opt.get("wa", [9, 3])
        wslot = {s: WA[k % 2] for k, s in enumerate(wsteps)}
        EXT = opt.get("ext", [3, 8])
        pslot = [PRING[n % 4] if n < 8 else EXT[n - 8] for n in range(nP)]
        wtag = lambda s: f"Q1{q2map[s]}" if s in q2map else f"T{u2map[s]}"
        def dma_w(s):
            return self.dma_wq(q2map[s], 1, wslot[s]) if s in q2map else self.dma_wo(u2map[s], wslot[s])
        def after_x(pcs, p):
            pcs[0] = [Ins(f"v_accvgpr_read_b32 v{VDUM+1}, a{AB+16*p+15}")] + pcs[0]
            return pcs
        def ext(k):
            pcs = self.dma_wq(k, 1, EXT[k])
            return after_x(pcs, 6 + EXT[k] - 8) if EXT[k] in (8, 9) else pcs
        ptail = opt.get("ptail", {5: "0", 6: "1K", 7: "V", 8: "Wk", 9: "v"})
        pmap = {"K": lambda: self.dma_k(0), "V": lambda: self.dma_v(0), "W": lambda: dma_w(0) if 0 in wslot else [],
                "k": lambda: self.dma_k(1), "v": lambda: self.dma_v(1)}
        for k in range(nP2):
            pmap[str(k)] = (lambda k=k: ext(k))
        pdone = "".join(ptail.values())
        for n in range(nP):
            sel, p = (0, n) if n < 8 else (1, n - 8)
            base = 16 * n
            xf = AB + 16 * p
            acc = VACC if sel else VO
            bg = base - LA - 1
            tags = [f"Q{sel}{p}"] + ([f"X{n}"] if n < 8 else []) + (["clr"] if n == 2 else [])
            TL.at(bg, [W(*tags), "s_barrier"], prio=90 if n else 10)
            TL.at(bg, self.stamp(f"P{n}"), prio=91 if n else 11)
            if n == 2:
                sk = self.lab("noadd")
                TL.at(bg + 3, [f"s_lshl_b32 s{sT1}, s{sB}, 4", f"s_mov_b32 s{sSPIN}, 1", f"s_cmp_lg_u32 s{sW}, 0", f"s_cbranch_scc1 {sk}",
                               aside(f"s_atomic_add s{sSPIN}, s[{SDBG}:{SDBG+1}], s{sT1}"), f"{sk}:"], prio=92)
            last = 16 * nP - LA - 3 if n == nP - 1 else 10 ** 9
            xdone = set()
            for m in range(16):
                ks, nb = (m & 3, m >> 2) if n == 7 else (m >> 2, m & 3)
                item = base + m
                c = "0" if (p == 0 and ks == 0) else v(acc + 16 * nb, 16)
                TL.mfma(f"{MF} {v(acc+16*nb,16)}, {a(fq(item),4)}, {a(xf+4*ks,4)}, {c}")
                if n < 8 and m < 4:
                    read(Ins(f"ds_read_b128 {a(xf+4*m,4)}, v{VXR+m} offset:{(n & 1)*16384}", tag=f"X{n}", slot=XSLOT[n & 1], priv=True),
                         item, bg + 1)
                read(self.tr_reads(item, pslot[n], ks, nb, tags[0]), item, bg + 1, last)
            pcs = []
            if n + 2 < 8:
                pcs = self.dma_wq(n + 2, 0, PRING[(n + 2) % 4]) + after_x(self.dma_x(n + 2), n)
            for ch in ptail.get(n, ""):
                pcs += pmap[ch]()
            even(pcs, max(bg + 1, 0) if n not in (6, 7) else base, base + 14 - LA)
        abase = 16 * nP
        q1 = self.qcvt(VO, AQ)
        TL.chain([(x, 112 + 4 * (k // 32) + 6, abase + (k // 16) - 2) for k, x in enumerate(q1)], prio=55)
        TL.at(abase - 1, self.stamp("Pend"), prio=99)

        tlist = [n for n in range(16) if n not in u2map.values()]
        lastw = wsteps[-2:]
        pool = [x for x in (8, 9, 3, 7) if x not in WA] + [5, 1, 6, 2] + [wslot[lastw[0]], 4, 0, wslot[lastw[1]]]
        tslot = [pool[k % 10] for k in range(len(tlist))]
        tw = lambda k: self.dma_wo(tlist[k], tslot[k])
        B = [bload(j) for j in range(3)]
        extra = opt.get("extra", {13: "ab", 14: "cd|01", 15: "ef23"})
        xmap = {"a": lambda: B[0][:4], "b": lambda: B[0][4:], "c": lambda: B[1][:4], "d": lambda: B[1][4:],
                "e": lambda: B[2][:4], "f": lambda: B[2][4:]}
        for k in range(10):
            xmap[str(k)] = (lambda k=k: tw(k))
        xdone = "".join(extra.values())
        bstart = min(s for s, x in extra.items() if set(x) & set("abcdef")) if set(xdone) & set("abcdef") else 15
        base = abase
        accinit = False
        sbase, qk, pvs = {}, {}, {}
        def emit_qk(b, first):
            s, kb = b >> 1, b & 1
            koff = (KSLOT[s % 3] - KSLOT[0]) * 16384
            d = v(VS + 16 * kb, 16)
            for st in range(8):
                c = d if st else ("0" if b % 16 == 0 else v(VNEGM, 16))
                item = TL.mfma(f"{MF} {d}, {a(fq(len(TL.m)),4)}, {a((ASP if b >= 16 else AQ)+4*st,4)}, {c}")
                qk.setdefault(b, item)
                read(Ins(f"ds_read_b128 {a(fq(item),4)}, v{VKRD+st} offset:{koff + kb*8192}", tag=f"K{s}", slot=KSLOT[s % 3]), item, first)
        def emit_pv(b, first):
            s, kb = b >> 1, b & 1
            for m in range(8):
                ks, db = 2 * kb + (m >> 2), m & 3
                d = v(OU[b >> 4] + 16 * db, 16)
                c = "0" if (b % 16 == 0 and m < 4) else d
                item = TL.mfma(f"{MF} {d}, {a(fq(len(TL.m)),4)}, {v(VP+4*ks,4)}, {c}")
                pvs.setdefault(b, item)
                read(self.tr_reads(item, VSLOT[s % 3], ks, db, f"V{s}"), item, first)
        def emit_w(s, ms, first):
            for m in ms:
                ks, nb = m >> 2, m & 3
                d = v((VACC if s < 8 else OACC) + 16 * nb, 16)
                isfirst = (q2map[s] == 0) if s < 8 else (not accinit)
                c = "0" if (isfirst and ks == 0) else d
                bop = a(AB + 16 * q2map[s] + 4 * ks, 4) if s < 8 else wo_bop(u2map[s], ks)
                item = TL.mfma(f"{MF} {d}, {a(fq(len(TL.m)),4)}, {bop}, {c}")
                read(self.tr_reads(item, wslot[s], ks, nb, wtag(s)), item, first)
        b1, b2 = {}, {}
        for s in range(16):
            hasw = s in wslot
            base = len(TL.m)
            sbase[s] = base
            b1[s] = base - LA - 1
            wfirst = b1[s] + 1
            tags = [f"K{s}"]
            if hasw and s in opt.get("split", (0,)):
                wfirst = base + 8 - LA
                TL.at(wfirst - 1, [W(wtag(s)), "s_barrier"], prio=90)
            elif hasw:
                tags.append(wtag(s))
            TL.at(b1[s], [W(*tags, lgkm0=(s == 0)), "s_barrier"], prio=90)
            TL.at(b1[s], self.stamp(f"A{s}"), prio=91)
            wa, wb = (range(16), []) if s == 15 else (range(8), range(8, 16))
            emit_qk(2 * s, b1[s] + 1)
            if hasw: emit_w(s, wa, wfirst)
            if s: emit_pv(2 * s - 1, b2[s - 1] + 1)
            pe = len(TL.m) - 1
            emit_qk(2 * s + 1, b1[s] + 1)
            if hasw: emit_w(s, wb, wfirst)
            b2[s] = max(pe, len(TL.m) - LA - 1) if (s == 0 or s == 15 or opt.get('b2late')) else max(pe, len(TL.m) - LA - 9)
            TL.at(b2[s], [W(f"V{s}"), "s_barrier"], prio=90)
            emit_pv(2 * s, b2[s] + 1)
            if hasw and s >= 8:
                accinit = True
        emit_pv(31, b2[15] + 1)
        base = len(TL.m)
        b1[16] = base - LA - 1
        sm = []
        for b in range(32):
            kb = b & 1
            lo, hi = qk[b] + 7 + 2, pvs[b] - 1
            if b % 16 == 0:
                hm = qk[b + 1] - 1
                if b == 16:
                    sm += [(x, pvs[15], hm) for x in self.norm_head()]
                sm.append((f"v_max3_f32 v{VMX0}, v{VS}, v{VS+1}, v{VS+2}", lo, hm))
                for k in range(3, 15, 2):
                    sm.append((f"v_max3_f32 v{VMX0}, v{VMX0}, v{VS+k}, v{VS+k+1}", lo, hm))
                sm.append(([f"v_max3_f32 v{VMX0}, v{VMX0}, v{VS+15}, v{VBIAS}", f"v_mov_b32 v{VMX1}, v{VMX0}"], lo, hm))
                sm.append(([f"v_permlane32_swap_b32 v{VMX0}, v{VMX1}", f"v_max_f32 v{VMX0}, v{VMX0}, v{VMX1}"], lo, hm))
                for k in range(16):
                    sm.append((f"v_sub_f32 v{VNEGM+k}, 0, v{VMX0}", lo, hm))
            pend = []
            for k in range(8):
                r = VS + 16 * kb + 2 * k
                e0 = VE + (2 * k) % 8
                if b % 16 == 0:
                    sm += [(f"v_sub_f32 v{r}, v{r}, v{VMX0}", lo, hi), (f"v_sub_f32 v{r+1}, v{r+1}, v{VMX0}", lo, hi)]
                sm += [(f"v_exp_f32 v{e0}, v{r}", lo, hi), (f"v_exp_f32 v{e0+1}, v{r+1}", lo, hi)]
                sm += [(x, lo, hi) for x in pend]
                pend = [f"v_cvt_pk_bf16_f32 v{VP+8*kb+k}, v{e0}, v{e0+1}"]
                if k == 0:
                    pend.append(f"v_add_f32 v{VLB}, v{e0}, v{e0+1}")
                else:
                    pend += [f"v_add_f32 v{VLB}, v{VLB}, v{e0}", f"v_add_f32 v{VLB}, v{VLB}, v{e0+1}"]
            sm += [(x, lo, hi) for x in pend]
            if b % 16 == 0:
                sm.append((f"v_mov_b32 v{VL0}, v{VLB}", lo, hi))
            else:
                other = b % 16 != 15
                clo = max(pvs[b - 1] + 7, qk[b + 1] if other else 0)
                sk = self.lab("nors")
                name = f"L_rescale_{b >> 4}{kb}{int(other)}"
                self.rnames.add((b >> 4, kb, other))
                sm.append((f"v_cmp_lt_f32 vcc, s{sTHR}, v{VLB}", lo, hi))
                sm.append(([f"s_cbranch_vccnz {sk}_r", f"{sk}:", f"v_add_f32 v{VL0}, v{VL0}, v{VLB}"], clo, hi))
                self.rare.append(f"{sk}_r:\ns_call_b64 s[{sRET}:{sRET+1}], {name}\ns_branch {sk}")
        sm += [(x, pvs[31], pvs[31] + 5) for x in self.norm_head()]
        TL.chain(sm, prio=50, rate=opt.get("smrate", 14))
        self.vccbusy = True
        n1hi = sbase[opt.get("n1", 9)] + 16
        TL.chain([(x, qk[17] + 2, n1hi) for k in range(32) for x in self.norm_pair(OU[0], k, dsta=AB)], prio=54, rate=8)
        o1st = self.frag_ops("buffer_store_dwordx4", lambda f: a(AB + 4 * f, 4), sOOWN, 0, "O1")
        TL.chain([(x, sbase[7], sbase[7] + 20) for x in self.wo_offsets()], prio=56)
        TL.at(sbase[8] - 1, self.stamp("U1end"), prio=80)
        for s in range(16):
            p1, p2 = [], []
            if s == 0:
                for ch in "KVWkv":
                    if ch not in pdone:
                        p1 += pmap[ch]()
            if s == 5:
                p1.append([Ins(f"s_lshl_b32 s{sT3}, s{sB}, 4"), self.poll_issue(SDBG, VZ, sT3)])
            if s == 7:
                p1.append(self.poll_check(SDBG, VZ, sT3, 16))
            if s == opt.get("f1", 11):
                p1.append([W("O1"), self.flag_store(sFO, sI, 1)])
            if s == bstart - 1:
                p1.append([self.poll_issue(SWS, VFL, sFO)])
            if s == bstart:
                p1.append(self.poll_check(SWS, VFL, sFO, 1))
            if s + 1 in wslot:
                p1 += dma_w(s + 1)
            xs = extra.get(s, "")
            x1, x2 = xs.split("|") if "|" in xs else (xs, "")
            for ch in x1: p1 += xmap[ch]()
            if s + 2 < 16:
                p1 += self.dma_k(s + 2)
                p2 += self.dma_v(s + 2)
            for ch in x2: p2 += xmap[ch]()
            if s == opt.get("n1", 9):
                assert n1hi < b2[s] + 1 or True
                even(p1, b1[s] + 1, max(b2[s], n1hi))
                even(o1st + p2, max(b2[s], n1hi) + 1, b1[s + 1])
            else:
                even(p1, b1[s] + 1, b2[s])
                even(p2, b2[s] + 1, b1[s + 1])
        st = self.frag_ops("buffer_store_dwordx4", lambda f: v(VS + 4 * f, 4), sOOWN, U2OFF, "O2")
        x = [self.stamp("Aend")]
        for k in range(32):
            x.append(self.norm_pair(OU[1], k, dstv=VS, packed=True))
            if k % 4 == 3:
                x.append(st[k >> 2])
        vm.append((x, base - 1, base - 1))
        lq = max(q2steps) if q2steps else -1
        q2lo = pvs[2 * lq] + 2 if q2steps else abase + 2
        TL.chain([(x, q2lo, sbase[8] + (k // 16) - 2) for k, x in enumerate(self.qcvt(VACC, ASP))], prio=55, rate=6)

        tb = base
        nT = len(tlist)
        npre = nT - 6
        NB = opt.get("nb", 4)
        sends = []
        for k, n in enumerate(tlist):
            if k > nT - NB:
                break
            grp = [k] if k < nT - NB else list(range(k, nT))
            bg = base - LA - 1
            TL.at(bg, [W(*[f"T{tlist[q]}" for q in grp], lgkm0=(k == 0)), "s_barrier"], prio=90)
            TL.at(bg, self.stamp(f"T{k}"), prio=91)
            if len(grp) == 1:
                order = [(k, m >> 2, m & 3) for m in range(16)]
            else:
                order = [(q, ks, nb) for nb in range(4) for q in grp for ks in range(4)]
            for m, (q, ks, nb) in enumerate(order):
                item = base + m
                d = v(OACC + 16 * nb, 16)
                c = "0" if (not accinit and ks == 0) else d
                TL.mfma(f"{MF} {d}, {a(fq(item),4)}, {wo_bop(tlist[q], ks)}, {c}")
                read(self.tr_reads(item, tslot[q], ks, nb, f"T{tlist[q]}"), item, bg + 1)
            accinit = True
            if len(grp) > 1:
                per = 4 * len(grp)
                for be in range(3):
                    g0 = base + per * (be + 1) + 2
                    sends += [(x, g0 + kk, g0 + kk + 1) for kk, x in enumerate(self.p_send(be))]
            base += len(order)
        fg = tb + opt.get("flaggap", 16 * npre - 40)
        cg = tb + opt.get("checkgap", 16 * npre - 8)
        pcs = []
        for ch in "abcdef":
            if ch not in xdone: pcs += xmap[ch]()
        for k in range(min(nT, 10)):
            if str(k) not in xdone: pcs += tw(k)
        even(pcs, tb, fg - 1)
        vm.append(([W("O2"), self.flag_store(sFO, sI, 2), self.stamp("O2ack")], fg, fg))
        pcs = []
        for k in range(10, nT): pcs += tw(k)
        pg = cg - opt.get("polld", 8)
        even(pcs, fg + 1, pg - 1)
        vm.append(([self.poll_issue(SWS, VFL, sFO)], pg, pg))
        vm.append(([self.poll_check(SWS, VFL, sFO, 2), self.stamp("O2seen"), dload(0)], cg, cg))
        even(dload(1) + dload(2), cg + 1, cg + opt.get("dspan", 24))
        vm += sends
        TL.chain(rd, prio=40, rate=16, maxper=2)
        TL.chain(vm, prio=60, rate=16)
        if self.stamps and opt.get("fine"):
            for k, g_ in enumerate(opt["fine"]):
                TL.at(g_, aside(f"s_memtime s[{sSTAMP+2*k}:{sSTAMP+2*k+1}]"), prio=1)
            self.stampnames = [f"g{g_}" for g_ in opt["fine"]]
        TL.flush(P)

        P.add(self.stamp("Tend"))
        P.add([W("PS"), self.flag_store(sFP, sG, 1)])
        P.add(self.stamp("Pack"))
        P.add(self.poll_issue(SWS, VFL, sFP))
        P.add(self.poll_check(SWS, VFL, sFP, 1))
        P.add(self.stamp("Pseen"))
        own = OACC + 48
        if self.p32:
            for be in range(3):
                P.add(self.frag_ops("buffer_load_dwordx4", lambda f: v(OU[1] + 16 * be + 4 * f, 4), sPR + be, 0, "PR", nfr=4))
            for be in range(3):
                for k in range(8):
                    P.e(f"v_pk_add_f32 {v(own+2*k,2)}, {v(own+2*k,2)}, {v(OU[1]+16*be+2*k,2)}")
        else:
            for be in range(3):
                P.add(self.frag_ops("buffer_load_dwordx4", lambda f: v(VS + 8 * be + 4 * f, 4), sPR + be, 0, "PR", nfr=2))
            for be in range(3):
                for k in range(8):
                    r = VS + 8 * be + k
                    t = VT + 2 * (k & 1)
                    P.e(f"v_lshlrev_b32 v{t}, 16, v{r}\nv_and_b32 v{t+1}, 0xffff0000, v{r}")
                    P.e(f"v_pk_add_f32 {v(own+2*k,2)}, {v(own+2*k,2)}, {v(t,2)}")
        for k in range(8):
            P.e(f"v_cvt_pk_bf16_f32 v{VP+k}, v{own+2*k}, v{own+2*k+1}")
        for uu in range(2):
            P.e(f"buffer_store_dwordx4 {v(VP+4*uu,4)}, v{VOUT}, {srd(SOUT)}, s{sOUTO} offen offset:{32*uu}")
        if self.stamps:
            P.add(W(vm0=True))
            P.add(self.stamp("end"))
            P.e(f"s_lshl_b32 s{sT0}, s2, 2\ns_add_u32 s{sT0}, s{sT0}, s{sW}\ns_lshl_b32 s{sT0}, s{sT0}, 6\ns_add_u32 s{sT0}, s{sT0}, {WS_STAMP}")
            for k in range(16):
                P.e(f"v_mov_b32 v{VO+k}, s{sSTAMP+(2*k if opt.get('fine') and k < 8 else k)}")
            P.e("s_mov_b64 exec, 1")
            for k in range(4):
                P.e(f"buffer_store_dwordx4 {v(VO+4*k,4)}, v{VZ}, {srd(SWS)}, s{sT0} offen offset:{16*k}")
        P.e("L_end:\ns_endpgm")
        rs = list(self.rare)
        for (uu, kb, other) in sorted(self.rnames):
            r0 = VS + 16 * kb
            rs += [f"L_rescale_{uu}{kb}{int(other)}:", "s_nop 15", f"v_max3_f32 v{VMX0}, v{r0}, v{r0+1}, 0"]
            for k in range(2, 16, 2):
                rs.append(f"v_max3_f32 v{VMX0}, v{VMX0}, v{r0+k}, v{r0+k+1}")
            rs += [f"v_mov_b32 v{VMX1}, v{VMX0}", "s_nop 1", f"v_permlane32_swap_b32 v{VMX0}, v{VMX1}", "s_nop 1",
                   f"v_max_f32 v{VMX0}, v{VMX0}, v{VMX1}", f"v_exp_f32 v{VMX1}, -v{VMX0}"]
            for k in range(16):
                rs.append(f"v_sub_f32 v{VNEGM+k}, v{VNEGM+k}, v{VMX0}")
            for k in (range(32) if other else range(16 * kb, 16 * kb + 16)):
                rs.append(f"v_sub_f32 v{VS+k}, v{VS+k}, v{VMX0}")
            for k in range(64):
                rs.append(f"v_mul_f32 v{OU[uu]+k}, v{OU[uu]+k}, v{VMX1}")
            rs += [f"v_mul_f32 v{VL0}, v{VL0}, v{VMX1}", f"v_mov_b32 v{VLB}, 0"]
            for k in range(8):
                rs += [f"v_exp_f32 v{VE}, v{r0+2*k}", f"v_exp_f32 v{VE+1}, v{r0+2*k+1}", "s_nop 0",
                       f"v_cvt_pk_bf16_f32 v{VP+8*kb+k}, v{VE}, v{VE+1}",
                       f"v_add_f32 v{VLB}, v{VLB}, v{VE}", f"v_add_f32 v{VLB}, v{VLB}, v{VE+1}"]
            rs += ["s_nop 3", f"s_setpc_b64 s[{sRET}:{sRET+1}]"]
        rs.append("L_codeend:")
        P.add(aside("\n".join(rs)))
        body = P.finalize(eager=self.opt.get('eager', 3))
        self.stats = P.stats
        txt = HEADER + '.amdgcn_target "amdgcn-amd-amdhsa--gfx950"\n.text\n' + f".globl {NAME}\n.p2align 8\n.type {NAME},@function\n"
        txt += body
        txt += f""".section .rodata,"a"
.p2align 6
.amdhsa_kernel {NAME}
  .amdhsa_next_free_vgpr 512
  .amdhsa_next_free_sgpr 102
  .amdhsa_accum_offset 256
  .amdhsa_group_segment_fixed_size 0
  .amdhsa_kernarg_size 64
  .amdhsa_user_sgpr_count 2
  .amdhsa_user_sgpr_kernarg_segment_ptr 1
  .amdhsa_system_sgpr_workgroup_id_x 1
  .amdhsa_float_denorm_mode_32 3
.end_amdhsa_kernel
"""
        return txt


if __name__ == "__main__":
    out = sys.argv[1] if len(sys.argv) > 1 else "standalone__mha_block_cached__near_ridge.s"
    kw = {}
    for x in sys.argv[2:]:
        k, val = x.split("=", 1)
        kw[k] = eval(val)
    g = Gen(**kw)
    open(out, "w").write(g.build())
    print("stats", g.stats, "stamps", g.stampnames)
```
